```python
import torch

def _softmax(x, axis=-1):
    return torch.softmax(x, dim=axis)
def _gelu(x):
    return torch.nn.functional.gelu(x, approximate="tanh")
def _silu(x):
    return torch.nn.functional.silu(x)
def _sigmoid(x):
    return torch.sigmoid(x)
def _layernorm(x, axis=-1, eps=1e-5):
    m = x.mean(dim=axis, keepdim=True)
    v = x.var(dim=axis, keepdim=True, unbiased=False)
    return (x - m) / torch.sqrt(v + eps)
def _scatter_add(tgt, idx, src, axis=0):
    return tgt.clone().index_add_(axis, idx, src)
def _segment_sum(src, seg, n):
    out = torch.zeros((n,) + src.shape[1:], dtype=src.dtype)
    return out.index_add_(0, seg, src)
def _pad(x, pw):
    flat = tuple(v for pair in reversed(pw) for v in pair)
    return torch.nn.functional.pad(x, flat)

kernel_name = 'recurrent_scan__ssm_conv_s5__dense_activation_mish__prompt'

def setup_inputs():

    _w = (lambda a: (lambda t: t.to(torch.bfloat16) if t.is_floating_point() else t)(torch.as_tensor(a)))
    def _A_setup():
        B, S, D = 1, 2048, 576
        P = D
        Lambda_re = -0.5 * (lambda _x: torch.exp(torch.as_tensor(_x)))((lambda *s: torch.randn(*s, dtype=torch.bfloat16) * 0.4)(P))
        Lambda_im = (lambda *s: torch.randn(*s, dtype=torch.bfloat16) * 0.8)(P) * 1.0
        B_re = (lambda *s: torch.randn(*s, dtype=torch.bfloat16) * 0.4)(P, D) * (D ** -0.5)
        B_im = (lambda *s: torch.randn(*s, dtype=torch.bfloat16) * 0.8)(P, D) * (D ** -0.5)
        C_re = (lambda *s: torch.randn(*s, dtype=torch.bfloat16) * 0.8)(D, P) * (P ** -0.5)
        C_im = (lambda *s: torch.randn(*s, dtype=torch.bfloat16) * 0.8)(D, P) * (P ** -0.5)
        log_dt = (lambda *s: torch.randn(*s, dtype=torch.bfloat16) * 0.4)(P) * 0.3 - 2.0
        Dskip = (lambda *s: torch.randn(*s, dtype=torch.bfloat16) * 0.2)(D)
        return {
            "x": _w((lambda *s: torch.randn(*s, dtype=torch.bfloat16) * 0.05)(B, S, D)),
            "Lambda_re": _w(Lambda_re),
            "Lambda_im": _w(Lambda_im),
            "B_re": _w(B_re),
            "B_im": _w(B_im),
            "C_re": _w(C_re),
            "C_im": _w(C_im),
            "log_dt": _w(log_dt),
            "Dskip": _w(Dskip),
        }
    _A_in = _A_setup()

    def _B_setup():
        B, S, D, F = 1, 2048, 576, 4608
        return {
            "x": _w((lambda *s: torch.randn(*s, dtype=torch.bfloat16) * 0.05)(B, S, D)),
            "w1": _w((lambda *s: torch.randn(*s, dtype=torch.bfloat16) * 0.8)(D, F) * (D ** -0.5)),
            "b1": _w((lambda *s: torch.randn(*s, dtype=torch.bfloat16) * 0.4)(F)),
            "w2": _w((lambda *s: torch.randn(*s, dtype=torch.bfloat16) * 0.1)(F, D) * (F ** -0.5)),
        }
    _B_in = _B_setup()

    return {
        "A_x": _A_in["x"],
        "A_Lambda_re": _A_in["Lambda_re"],
        "A_Lambda_im": _A_in["Lambda_im"],
        "A_B_re": _A_in["B_re"],
        "A_B_im": _A_in["B_im"],
        "A_C_re": _A_in["C_re"],
        "A_C_im": _A_in["C_im"],
        "A_log_dt": _A_in["log_dt"],
        "A_Dskip": _A_in["Dskip"],
        "B_x": _B_in["x"],
        "B_w1": _B_in["w1"],
        "B_b1": _B_in["b1"],
        "B_w2": _B_in["w2"],
    }

def reference(A_x, A_Lambda_re, A_Lambda_im, A_B_re, A_B_im, A_C_re, A_C_im, A_log_dt, A_Dskip, B_x, B_w1, B_b1, B_w2):
    def _A_ref(x, Lambda_re, Lambda_im, B_re, B_im, C_re, C_im, log_dt, Dskip):
        Bsz, L, H = x.shape
        Lam = Lambda_re + 1j * Lambda_im
        Bmat = B_re + 1j * B_im
        Cmat = C_re + 1j * C_im
        dt = torch.exp(log_dt)
        Lam_bar = torch.exp(dt * Lam)
        B_bar = ((Lam_bar - 1.0) / Lam)[:, None] * Bmat
        Bu = torch.einsum("bld,pd->blp", x + 0j, B_bar)
        h = torch.zeros_like(Bu[:, 0, :])
        hs = []
        for t in range(L):
            h = Lam_bar[None, :] * h + Bu[:, t, :]
            hs.append(h)
        hseq = torch.stack(hs, 1)
        y = 2.0 * torch.einsum("blp,dp->bld", hseq, Cmat).real + x * Dskip[None, None, :]
        return y

    def _B_ref(x, w1, b1, w2):
        h = torch.einsum("bsd,df->bsf", x, w1) + b1
        sp = torch.log1p(torch.exp(-torch.abs(h))) + torch.where(h > 0, h, torch.zeros_like(h))
        act = h * torch.tanh(sp)
        return torch.einsum("bsf,fd->bsd", act, w2)

    x = A_x
    xn = _layernorm(x, axis=-1)
    s = _A_ref(xn, A_Lambda_re, A_Lambda_im, A_B_re, A_B_im, A_C_re, A_C_im, A_log_dt, A_Dskip)
    g = _silu(_B_ref(xn, B_w1, B_b1, B_w2))
    return x + s * g
```

```python
def vr(b, n=1):
    return f"v{b}" if n == 1 else f"v[{b}:{b + n - 1}]"


def sr(b, n=1):
    return f"s{b}" if n == 1 else f"s[{b}:{b + n - 1}]"


class Asm:
    def __init__(self):
        self.lines = []
        self.vmq = []
        self.lgq = []
        self.ic = 0
        self.mfma_at = {}
        self.lab = 0

    def raw(self, s):
        self.lines.append(s)

    def c(self, s):
        self.lines.append("    ; " + s)

    def I(self, s, ws=1):
        self.lines.append("    " + s)
        self.ic += ws

    def nop(self, n):
        while n > 0:
            k = min(n, 8)
            self.I(f"s_nop {k - 1}", ws=k)
            n -= k

    def label(self, name):
        self.lines.append(name + ":")

    def newlab(self, p="L"):
        self.lab += 1
        return f".{p}_{self.lab}"

    def vm(self, s, tag=None):
        self.I(s)
        self.vmq.append(tag)

    def lg(self, s, tag=None):
        self.I(s)
        self.lgq.append(tag)

    def _younger(self, q, tag):
        idx = None
        for i in range(len(q) - 1, -1, -1):
            if q[i] == tag:
                idx = i
                break
        if idx is None:
            return None
        return len(q) - 1 - idx, idx

    def wait(self, vm=None, lg=None):
        parts = []
        if vm is not None:
            r = self._younger(self.vmq, vm)
            if r is not None:
                n, idx = r
                if n > 63:
                    idx = len(self.vmq) - 1 - 63
                    n = 63
                parts.append(f"vmcnt({n})")
                del self.vmq[: idx + 1]
        if lg is not None:
            r = self._younger(self.lgq, lg)
            if r is not None:
                n, idx = r
                if n > 15:
                    idx = len(self.lgq) - 1 - 15
                    n = 15
                parts.append(f"lgkmcnt({n})")
                del self.lgq[: idx + 1]
        if parts:
            self.I("s_waitcnt " + " ".join(parts))

    def wait0(self, vm=False, lg=False):
        parts = []
        if vm:
            parts.append("vmcnt(0)")
            self.vmq = []
        if lg:
            parts.append("lgkmcnt(0)")
            self.lgq = []
        self.I("s_waitcnt " + " ".join(parts))

    def mfma(self, d, a, b, first=False):
        c = "0" if first else vr(d, 16)
        self.I(f"v_mfma_f32_32x32x16_bf16 {vr(d, 16)}, {vr(a, 4)}, {vr(b, 4)}, {c}")
        self.mfma_at[d] = self.ic

    def need_acc(self, d, states=14):
        if d in self.mfma_at:
            gap = self.ic - self.mfma_at[d]
            if gap < states:
                self.nop(states - gap)
            del self.mfma_at[d]

    def text(self):
        return "\n".join(self.lines) + "\n"
```

```python
from asmlib import vr

SEG = 81920
KPARK = 90112
ACC = (80, 48)
V_B = 32
V_RD = 1
V_DM = 6
V_K = 8
V_PF = 12
TMP = 14
SPIN_LIMIT = 1 << 20
S_NEED = 94
S_HI = 96
S_TG0 = 98
S_TG1 = 100
S_SPIN = 83


def ssm(a, G):
    S = G
    a.I(f"s_mov_b32 s{S.S_ROLE}, s3")
    a.I(f"s_mul_i32 s{S.S_CH0}, s3, 5")
    a.I("s_cmp_eq_u32 s3, 3")
    a.I(f"s_cselect_b32 s{S.S_CH0}, 14, s{S.S_CH0}")
    a.I(f"s_add_u32 s{S.S_SIDX}, s3, 12")
    a.I(f"s_bitcmp1_b32 s{S.S_W}, 1")
    a.I(f"s_cselect_b32 s{S.R_WA}, s{S.P_BIM}, s{S.P_BRE}")
    a.I(f"s_cselect_b32 s{S.R_WA + 1}, s{S.P_BIM + 1}, s{S.P_BRE + 1}")
    a.I(f"s_and_b32 s{S.R_WA + 1}, s{S.R_WA + 1}, 0xffff")
    a.I(f"s_mov_b32 s{S.R_WA + 2}, 663552")
    a.I(f"s_mov_b32 s{S.R_WA + 3}, 0x00020000")
    a.I(f"s_bitcmp1_b32 s{S.S_W}, 2")
    a.I(f"s_cselect_b32 s{S.R_WB}, s{S.P_CIM}, s{S.P_CRE}")
    a.I(f"s_cselect_b32 s{S.R_WB + 1}, s{S.P_CIM + 1}, s{S.P_CRE + 1}")
    a.I(f"s_and_b32 s{S.R_WB + 1}, s{S.R_WB + 1}, 0xffff")
    a.I(f"s_mov_b32 s{S.R_WB + 2}, 663552")
    a.I(f"s_mov_b32 s{S.R_WB + 3}, 0x00020000")
    S.srd(a, S.R_MISC, S.P_LRE, 1152)
    S.srd(a, S.R_M2, S.P_LIM, 1152)
    S.srd(a, S.R_M3, S.P_LDT, 1152)
    S.srd(a, S.R_DBG, S.P_DBG, 256)
    a.I(f"s_mul_i32 s{S.S_B1}, s{S.S_CH0}, {32 * 1152}")
    a.I(f"s_lshl_b32 s{S.S_B2}, s{S.S_CH0}, 6")
    a.I(f"s_lshl_b32 s{S.S_T3}, s{S.S_W}, 11")
    a.I(f"s_add_u32 s{S.S_T3}, s{S.S_T3}, {S.RING}")
    a.I(f"s_lshl_b32 s{S.S_T1}, s{S.S_HALF}, 5")
    a.I(f"s_and_b32 s{S.S_T2}, s{S.S_W}, 1")
    a.I(f"s_lshl_b32 s{S.S_T2}, s{S.S_T2}, 4")
    a.I(f"s_add_u32 s{S.S_T1}, s{S.S_T1}, s{S.S_T2}")
    a.I(f"v_add_u32 v20, s{S.S_T1}, v8")
    a.I("v_mul_u32_u24 v20, 0x480, v20")
    a.I("v_lshrrev_b32 v21, 4, v0")
    a.I("v_xor_b32 v21, v21, v9")
    a.I(f"v_lshl_add_u32 v{V_DM}, v21, 4, v20")
    a.I("v_xor_b32 v21, 4, v21")
    a.I("v_add_u32 v20, 9216, v20")
    a.I(f"v_lshl_add_u32 v{V_DM + 1}, v21, 4, v20")
    bu_dma(a, S, 0)
    a.I("v_and_b32 v20, 31, v0")
    a.I("v_lshrrev_b32 v21, 5, v0")
    a.I("v_bfe_u32 v22, v20, 1, 3")
    a.I("v_xor_b32 v22, v22, v21")
    a.I(f"s_lshl_b32 s{S.S_T1}, s{S.S_HALF}, 13")
    a.I(f"s_add_u32 s{S.S_T1}, s{S.S_T1}, {S.RING}")
    a.I("v_lshlrev_b32 v20, 7, v20")
    a.I(f"v_add_u32 v20, s{S.S_T1}, v20")
    for ks in range(4):
        a.I(f"v_xor_b32 v21, {2 * ks}, v22")
        a.I(f"v_lshl_add_u32 v{V_RD + ks}, v21, 4, v20")
    a.I("v_and_b32 v20, 15, v0")
    a.I(f"v_cmp_gt_u32 s[{S_NEED}:{S_NEED + 1}], s{S.S_TILE}, v20")
    a.I(f"s_mov_b32 s{S_HI}, 0")
    a.I(f"s_mov_b32 s{S_HI + 1}, -1")
    a.I(f"s_bitcmp1_b32 s{S.S_TG}, 0")
    a.I(f"s_cselect_b64 s[{S_TG0}:{S_TG0 + 1}], -1, 0")
    a.I(f"s_bitcmp1_b32 s{S.S_TG}, 1")
    a.I(f"s_cselect_b64 s[{S_TG1}:{S_TG1 + 1}], -1, 0")
    S.layernorm(a, ssm=True)
    S.stamp(a, 1)
    a.I(f"s_add_u32 s{S.S_T1}, s{S.S_CH0}, s{S.S_HALF}")
    a.I(f"s_lshl_b32 s{S.S_T1}, s{S.S_T1}, 6")
    a.I("v_and_b32 v20, 31, v0")
    a.I("v_lshlrev_b32 v20, 1, v20")
    for r in range(3):
        for j, rs in enumerate((S.R_MISC, S.R_M2, S.R_M3)):
            a.vm(f"buffer_load_ushort v{ACC[1] + 3 * r + j}, v20, s[{rs}:{rs + 3}], s{S.S_T1} offen offset:{128 * r}",
                 tag=("raw", r, j))
    a.wait(vm=("dma", 0))
    a.wait0(lg=True)
    a.I("s_barrier")
    S.stamp(a, 2)
    bu_dma(a, S, 1)
    bu_dma(a, S, 2)
    S.srd(a, S.R_X, S.P_WS, S.AGG_BYTES)
    a.I(f"s_lshl_b32 s{S.S_T1}, s{S.S_HALF}, 12")
    a.I(f"s_lshl_b32 s{S.S_T2}, s{S.S_TG}, 9")
    a.I(f"s_add_u32 s{S.S_T1}, s{S.S_T1}, s{S.S_T2}")
    a.I(f"s_add_u32 s{S.S_T1}, s{S.S_T1}, {SEG}")
    a.I("v_lshlrev_b32 v20, 3, v0")
    a.I(f"v_add_u32 v20, s{S.S_T1}, v20")
    a.I("v_mov_b32 v22, 0")
    a.I("v_mov_b32 v23, 0")
    a.lg("ds_write_b64 v20, v[22:23]", tag="zero")
    bu_rd(a, 0, 0)
    bu_rd(a, 0, 1)
    a.I(f"s_cmp_lt_u32 s{S.S_ROLE}, 2")
    a.I("s_cbranch_scc0 .Lssm_nt4")
    saved = (list(a.vmq), list(a.lgq))
    main(a, S, 5)
    a.label(".Lssm_nt4")
    a.vmq, a.lgq, a.mfma_at = list(saved[0]), list(saved[1]), {}
    main(a, S, 4)


def bu_dma(a, S, n):
    r, kb = divmod(n, 9)
    slot = (n + 3) & 3
    a.I(f"s_add_u32 s{S.S_T0}, s{S.S_B1}, {r * 64 * 1152 + kb * 128}")
    for e in range(2):
        a.I(f"s_add_u32 m0, s{S.S_T3}, {slot * 16384 + e * 1024}")
        a.nop(1)
        a.vm(f"buffer_load_dwordx4 v{V_DM + e}, s[{S.R_WA}:{S.R_WA + 3}], s{S.S_T0} offen lds", tag=("dma", n))


def c_dma(a, S, n, c, NT):
    slot = (n + 3) & 3
    for e in range(2):
        un = 2 * c + e
        if un >= NT * 9:
            continue
        t, dp = divmod(un, 9)
        a.I(f"s_add_u32 m0, s{S.S_M0B}, {slot * 16384 + e * 8192}")
        a.I(f"s_add_u32 s{S.S_T0}, s{S.S_B2}, {dp * 64 * 1152 + t * 64}")
        a.vm(f"buffer_load_dwordx4 v{V_DM}, s[{S.R_WB}:{S.R_WB + 3}], s{S.S_T0} offen lds", tag=("dma", n))


def bu_rd(a, n, ks):
    slot = (n + 3) & 3
    for mat in range(2):
        a.lg(f"ds_read_b128 {vr(V_B + (ks & 1) * 8 + mat * 4, 4)}, v{V_RD + ks} offset:{slot * 16384 + mat * 4096}",
             tag=("B", n, ks, mat))


def c_rd(a, nbu, i, NT):
    un, f = divmod(i, 4)
    if un >= NT * 9:
        return
    n = nbu + (un >> 1)
    slot = (n + 3) & 3
    off = slot * 16384 + (un & 1) * 8192 + (f >> 1) * 4096
    a.lg(f"ds_read_b128 {vr(V_B + 4 * (i & 3), 4)}, v{V_RD + (f & 1)} offset:{off}", tag=("C", i))


class Ops(list):
    def op(self, s):
        self.append(lambda a, s=s: a.I(s))

    def fn(self, f):
        self.append(f)

    def nop(self, n):
        self.append(lambda a, n=n: a.nop(n))


def const_ops(S, r):
    o = Ops()
    op = o.op
    AB = ACC[1]
    A_, B_, L_ = AB + 3 * r, AB + 3 * r + 1, AB + 3 * r + 2
    t = [AB + 12 + i for i in range(8)]
    kb = V_K if r == 0 else AB + 20
    lr, li, cr, ci = kb, kb + 1, kb + 2, kb + 3
    o.fn(lambda a: a.wait(vm=("raw", r, 2)))
    op(f"v_lshlrev_b32 v{A_}, 16, v{A_}")
    op(f"v_lshlrev_b32 v{B_}, 16, v{B_}")
    op(f"v_lshlrev_b32 v{L_}, 16, v{L_}")
    op(f"v_mul_f32 v{L_}, 0x3fb8aa3b, v{L_}")
    op(f"v_exp_f32 v{L_}, v{L_}")
    op(f"v_mul_f32 v{t[7]}, v{A_}, v{A_}")
    op(f"v_cvt_pk_bf16_f32 v{L_}, v{L_}, v{L_}")
    op(f"v_fma_f32 v{t[7]}, v{B_}, v{B_}, v{t[7]}")
    op(f"v_lshlrev_b32 v{L_}, 16, v{L_}")
    op(f"v_rcp_f32 v{t[6]}, v{t[7]}")
    op(f"v_mul_f32 v{t[0]}, v{L_}, v{A_}")
    op(f"v_mul_f32 v{t[1]}, v{L_}, v{B_}")
    op(f"v_mul_f32 v{t[0]}, 0x3fb8aa3b, v{t[0]}")
    op(f"v_mul_f32 v{t[1]}, 0.15915494, v{t[1]}")
    op(f"v_exp_f32 v{t[0]}, v{t[0]}")
    op(f"v_rndne_f32 v{t[2]}, v{t[1]}")
    op(f"v_sub_f32 v{t[1]}, v{t[1]}, v{t[2]}")
    op(f"v_fma_f32 v{t[5]}, -v{t[7]}, v{t[6]}, 2.0")
    op(f"v_sin_f32 v{t[2]}, v{t[1]}")
    op(f"v_cos_f32 v{t[3]}, v{t[1]}")
    op(f"v_mul_f32 v{t[6]}, v{t[6]}, v{t[5]}")
    op(f"v_add_f32 v{t[6]}, v{t[6]}, v{t[6]}")
    op(f"v_mul_f32 v{li}, v{t[0]}, v{t[2]}")
    op(f"v_mul_f32 v{lr}, v{t[0]}, v{t[3]}")
    op(f"v_add_f32 v{t[0]}, -1.0, v{lr}")
    op(f"v_mul_f32 v{t[1]}, v{t[0]}, v{A_}")
    op(f"v_mul_f32 v{t[2]}, v{li}, v{A_}")
    op(f"v_fma_f32 v{t[1]}, v{li}, v{B_}, v{t[1]}")
    op(f"v_fma_f32 v{t[2]}, -v{t[0]}, v{B_}, v{t[2]}")
    op(f"v_mul_f32 v{cr}, v{t[1]}, v{t[6]}")
    op(f"v_mul_f32 v{ci}, v{t[2]}, v{t[6]}")
    if r > 0:
        kpark_addr(o, S, t[0])
        o.fn(lambda a: a.lg(f"ds_write_b128 v{t[0]}, {vr(kb, 4)} offset:{(r - 1) * 1024}", tag=("kpw", r)))
        o.nop(2)
    return o


def kpark_addr(o, S, d):
    o.op(f"s_lshl_b32 s{S.S_T1}, s{S.S_HALF}, 9")
    o.op(f"s_add_u32 s{S.S_T1}, s{S.S_T1}, {KPARK}")
    o.op(f"v_and_b32 v{d}, 31, v0")
    o.op(f"v_lshlrev_b32 v{d}, 4, v{d}")
    o.op(f"v_add_u32 v{d}, s{S.S_T1}, v{d}")


def cacc(o, pr, pi, cr, ci, ar, ai):
    o.op(f"v_fma_f32 v{ar}, v{pr}, v{cr}, v{ar}")
    o.op(f"v_fma_f32 v{ai}, v{pr}, v{ci}, v{ai}")
    o.op(f"v_fma_f32 v{ar}, -v{pi}, v{ci}, v{ar}")
    o.op(f"v_fma_f32 v{ai}, v{pi}, v{cr}, v{ai}")


def cstep(o, pr, pi, cr, ci, ar, ai, dr, di):
    o.op(f"v_fma_f32 v{dr}, v{pr}, v{cr}, v{ar}")
    o.op(f"v_fma_f32 v{di}, v{pr}, v{ci}, v{ai}")
    o.op(f"v_fma_f32 v{dr}, -v{pi}, v{ci}, v{dr}")
    o.op(f"v_fma_f32 v{di}, v{pi}, v{cr}, v{di}")


def cmul(o, pr, pi, cr, ci, dr, di):
    o.op(f"v_mul_f32 v{dr}, v{pr}, v{cr}")
    o.op(f"v_mul_f32 v{di}, v{pr}, v{ci}")
    o.op(f"v_fma_f32 v{dr}, -v{pi}, v{ci}, v{dr}")
    o.op(f"v_fma_f32 v{di}, v{pi}, v{cr}, v{di}")


def csq(o, dr, di, sr_, si, t):
    o.op(f"v_mul_f32 v{t}, v{si}, v{si}")
    o.op(f"v_mul_f32 v{di}, v{sr_}, v{si}")
    o.op(f"v_fma_f32 v{dr}, v{sr_}, v{sr_}, -v{t}")
    o.op(f"v_add_f32 v{di}, v{di}, v{di}")


def seg_addr(o, S, d, t):
    o.op(f"s_lshl_b32 s{S.S_T1}, s{S.S_HALF}, 12")
    o.op(f"s_lshl_b32 s{S.S_T2}, s{S.S_TG}, 9")
    o.op(f"s_add_u32 s{S.S_T1}, s{S.S_T1}, s{S.S_T2}")
    o.op(f"s_add_u32 s{S.S_T1}, s{S.S_T1}, {SEG}")
    o.op(f"v_and_b32 v{d}, 31, v0")
    o.op(f"v_lshlrev_b32 v{d}, 3, v{d}")
    o.op(f"v_lshrrev_b32 v{t}, 5, v0")
    o.op(f"v_lshl_add_u32 v{d}, v{t}, 8, v{d}")
    o.op(f"v_add_u32 v{d}, s{S.S_T1}, v{d}")


SA, OWN = 31, 28


def s1_ops(S, r):
    o = Ops()
    acc = ACC[r & 1]
    lr, li = V_K, V_K + 1
    seg_addr(o, S, SA, 30)
    if r > 0:
        o.fn(lambda a: a.wait(lg=("kpr", r)))
    o.fn(lambda a: a.need_acc(acc))
    o.fn(lambda a: a.need_acc(acc + 16))
    cur = (acc, acc + 16)
    pp = [(OWN - 2, OWN - 1), (OWN, OWN + 1)]
    for t in range(1, 16):
        d = pp[t & 1]
        cstep(o, lr, li, cur[0], cur[1], acc + t, acc + 16 + t, d[0], d[1])
        cur = d
    assert cur == (OWN, OWN + 1)
    o.fn(lambda a: a.lg(f"ds_write_b64 v{SA}, {vr(OWN, 2)} offset:{7 * 256}", tag=("seg", r)))
    return o


def s2_ops(S, r):
    o = Ops()
    L = TMP
    for j in range(7):
        o.fn(lambda a, j=j: a.lg(f"ds_read_b64 {vr(L + 2 * j, 2)}, v{SA} offset:{j * 256}", tag=("sg", r, j)))
    pr, pi = 30, 5
    csq(o, pr, pi, V_K, V_K + 1, V_PF)
    for _ in range(3):
        csq(o, pr, pi, pr, pi, V_PF)
    o.fn(lambda a: a.wait(lg=("sg", r, 1)))
    for j in range(1, 7):
        if j > 1:
            o.fn(lambda a, j=j: a.wait(lg=("sg", r, j)))
        if j < 6:
            cacc(o, pr, pi, L + 2 * j - 2, L + 2 * j - 1, L + 2 * j, L + 2 * j + 1)
        else:
            cstep(o, pr, pi, L + 2 * j - 2, L + 2 * j - 1, L + 2 * j, L + 2 * j + 1, V_PF, V_PF + 1)
    cacc(o, pr, pi, V_PF, V_PF + 1, OWN, OWN + 1)
    o.op(f"s_mul_i32 s{S.S_T1}, s{S.S_TILE}, 4608")
    o.op(f"s_add_u32 s{S.S_T2}, s{S.S_CH0}, s{S.S_HALF}")
    o.op(f"s_lshl_b32 s{S.S_T2}, s{S.S_T2}, 8")
    o.op(f"s_add_u32 s{S.S_T1}, s{S.S_T1}, s{S.S_T2}")
    o.op(f"s_add_u32 s{S.S_T1}, s{S.S_T1}, {512 * r - 256}")
    o.op(f"s_cmp_eq_u32 s{S.S_TG}, 3")
    o.op(f"s_cselect_b32 s{S.S_T1}, s{S.S_T1}, 0x100000")
    o.op("v_lshlrev_b32 v30, 3, v0")
    o.op(f"v_add_u32 v30, s{S.S_T1}, v30")
    o.op("v_mov_b32 v5, 0x100000")
    o.op(f"v_cndmask_b32 v30, v5, v30, s[{S_HI}:{S_HI + 1}]")
    return o


def pub_op(S, r):
    return lambda a: a.vm(f"buffer_store_dwordx2 {vr(OWN, 2)}, v30, s[{S.R_X}:{S.R_X + 3}], 0 offen sc1", tag=("pub", r))


def flag_ops(S, r):
    o = Ops()
    o.op(f"s_lshl_b32 s{S.S_T1}, s{S.S_ROLE}, 4")
    o.op(f"s_add_u32 s{S.S_T1}, s{S.S_T1}, s{S.S_TILE}")
    o.op(f"s_lshl_b32 s{S.S_T1}, s{S.S_T1}, 2")
    o.op(f"s_cmp_eq_u32 s{S.S_W}, 3")
    o.op(f"s_cselect_b32 s{S.S_T1}, s{S.S_T1}, 0x1000")
    o.op("v_lshlrev_b32 v30, 12, v0")
    o.op(f"v_add_u32 v30, s{S.S_T1}, v30")
    o.op(f"v_mov_b32 v31, {r + 1}")
    o.fn(lambda a: a.vm(f"buffer_store_dword v31, v30, s[{S.R_DBG}:{S.R_DBG + 3}], 0 offen sc1", tag=("flag", r)))
    return o


def poll_issue_ops(S, r):
    o = Ops()
    o.op("v_and_b32 v31, 15, v0")
    o.op(f"s_lshl_b32 s{S.S_T1}, s{S.S_ROLE}, 6")
    o.op("v_lshlrev_b32 v31, 2, v31")
    o.op(f"v_add_u32 v31, s{S.S_T1}, v31")
    o.fn(lambda a: a.vm(f"buffer_load_dword v30, v31, s[{S.R_DBG}:{S.R_DBG + 3}], 0 offen sc1", tag=("poll", r)))
    return o


def poll_check(S, r):
    def f(a):
        ok = a.newlab("pok")
        lp = a.newlab("plp")
        a.wait(vm=("poll", r))
        a.I(f"v_cmp_gt_u32 vcc, {r + 1}, v30")
        a.I(f"s_and_b64 vcc, vcc, s[{S_NEED}:{S_NEED + 1}]")
        a.I(f"s_cbranch_scc0 {ok}")
        a.I(f"s_mov_b32 s{S_SPIN}, {SPIN_LIMIT}")
        a.label(lp)
        a.I(f"buffer_load_dword v30, v31, s[{S.R_DBG}:{S.R_DBG + 3}], 0 offen sc1")
        a.I("s_waitcnt vmcnt(0)")
        a.I(f"v_cmp_gt_u32 vcc, {r + 1}, v30")
        a.I(f"s_and_b64 vcc, vcc, s[{S_NEED}:{S_NEED + 1}]")
        a.I(f"s_cbranch_scc0 {ok}")
        a.I(f"s_sub_u32 s{S_SPIN}, s{S_SPIN}, 1")
        a.I(f"s_cmp_lg_u32 s{S_SPIN}, 0")
        a.I(f"s_cbranch_scc1 {lp}")
        a.label(ok)
        a.I(f"s_sub_u32 s{S.S_T1}, s{S.S_TILE}, 1")
        a.I(f"s_mul_i32 s{S.S_T1}, s{S.S_T1}, 4608")
        a.I(f"s_add_u32 s{S.S_T2}, s{S.S_CH0}, s{S.S_HALF}")
        a.I(f"s_lshl_b32 s{S.S_T2}, s{S.S_T2}, 8")
        a.I(f"s_add_u32 s{S.S_T1}, s{S.S_T1}, s{S.S_T2}")
        a.I(f"s_add_u32 s{S.S_T1}, s{S.S_T1}, {512 * r}")
        a.I("v_and_b32 v30, 31, v0")
        a.I("v_lshlrev_b32 v30, 3, v30")
        a.I("v_lshrrev_b32 v31, 5, v0")
        a.I("v_mul_u32_u24 v31, 4608, v31")
        a.I("v_sub_u32 v30, v30, v31")
        a.I(f"v_add_u32 v30, s{S.S_T1}, v30")
        for m in range(7, -1, -1):
            a.I(f"v_subrev_u32 v{TMP + 2 * m}, {9216 * m}, v30")
            a.vm(f"buffer_load_dwordx2 {vr(TMP + 2 * m, 2)}, v{TMP + 2 * m}, s[{S.R_X}:{S.R_X + 3}], 0 offen sc1",
                 tag=("lb", r, m))
    return f


def pow256_ops():
    o = Ops()
    csq(o, 30, 31, V_K, V_K + 1, 5)
    for _ in range(7):
        csq(o, 30, 31, 30, 31, 5)
    return o


def s4_ops(S, r, reload_k):
    o = Ops()
    acc = ACC[r & 1]
    lr, li, cr2, ci2 = V_K, V_K + 1, V_K + 2, V_K + 3
    for m in range(6, -1, -1):
        o.fn(lambda a, m=m: a.wait(vm=("lb", r, m)))
        cacc(o, 30, 31, TMP + 2 * m + 2, TMP + 2 * m + 3, TMP + 2 * m, TMP + 2 * m + 1)
    csq(o, 16, 17, lr, li, 5)
    for _ in range(3):
        csq(o, 16, 17, 16, 17, 5)
    csq(o, 18, 19, 16, 17, 5)
    csq(o, 20, 21, 18, 19, 5)
    csq(o, 22, 23, 20, 21, 5)
    cmul(o, 22, 23, 14, 15, 24, 25)
    o.op(f"v_cndmask_b32 v14, v14, v24, s[{S_HI}:{S_HI + 1}]")
    o.op(f"v_cndmask_b32 v15, v15, v25, s[{S_HI}:{S_HI + 1}]")
    o.op("v_mov_b32 v24, v14")
    o.op("v_mov_b32 v25, v15")
    o.op(f"v_cndmask_b32 v16, 1.0, v16, s[{S_HI}:{S_HI + 1}]")
    o.op(f"v_cndmask_b32 v17, 0, v17, s[{S_HI}:{S_HI + 1}]")
    o.op("v_permlane32_swap_b32 v14, v24")
    o.op("v_permlane32_swap_b32 v15, v25")
    o.op(f"v_cndmask_b32 v18, 1.0, v18, s[{S_TG0}:{S_TG0 + 1}]")
    o.op(f"v_cndmask_b32 v19, 0, v19, s[{S_TG0}:{S_TG0 + 1}]")
    o.op(f"v_cndmask_b32 v20, 1.0, v20, s[{S_TG1}:{S_TG1 + 1}]")
    o.op(f"v_cndmask_b32 v21, 0, v21, s[{S_TG1}:{S_TG1 + 1}]")
    o.op("v_add_f32 v14, v14, v24")
    o.op("v_add_f32 v15, v15, v25")
    cmul(o, 16, 17, 18, 19, 22, 23)
    cmul(o, 22, 23, 20, 21, 16, 17)
    cacc(o, 16, 17, 14, 15, V_PF, V_PF + 1)
    o.op("v_and_b32 v30, 3, v0")
    o.op(f"v_xor_b32 v30, s{S.S_TG}, v30")
    o.op("v_lshlrev_b32 v30, 6, v30")
    o.op("v_and_b32 v31, 31, v0")
    o.op("v_lshl_add_u32 v30, v31, 8, v30")
    o.op("v_lshrrev_b32 v31, 5, v0")
    o.op("v_lshl_add_u32 v30, v31, 5, v30")
    o.op(f"s_lshl_b32 s{S.S_T1}, s{S.S_HALF}, 14")
    o.op(f"s_add_u32 s{S.S_T1}, s{S.S_T1}, {r * 32768}")
    o.op(f"v_add_u32 v31, s{S.S_T1}, v30")
    cur = (V_PF, V_PF + 1)
    tt = [(30, 5), (V_PF, V_PF + 1)]
    for j in range(16):
        cacc(o, lr, li, cur[0], cur[1], acc + j, acc + 16 + j)
        cur = (acc + j, acc + 16 + j)
        tr, ti = tt[j & 1]
        o.op(f"v_mul_f32 v{tr}, v{cr2}, v{cur[0]}")
        o.op(f"v_mul_f32 v{ti}, -v{cr2}, v{cur[1]}")
        o.op(f"v_fma_f32 v{tr}, -v{ci2}, v{cur[1]}, v{tr}")
        o.op(f"v_fma_f32 v{ti}, -v{ci2}, v{cur[0]}, v{ti}")
        if j & 1:
            blk, k = divmod(j >> 1, 4)
            o.op(f"v_cvt_pk_bf16_f32 v{TMP + 8 * blk + k}, v{tt[0][0]}, v{tt[1][0]}")
            o.op(f"v_cvt_pk_bf16_f32 v{TMP + 8 * blk + 4 + k}, v{tt[0][1]}, v{tt[1][1]}")
            if k == 3:
                o.fn(lambda a, blk=blk: a.lg(f"ds_write_b128 v31, {vr(TMP + 8 * blk, 4)} offset:{16 * blk}", tag=("hw", r)))
                o.fn(lambda a, blk=blk: a.lg(f"ds_write_b128 v31, {vr(TMP + 8 * blk + 4, 4)} offset:{8192 + 16 * blk}", tag=("hw", r)))
    if reload_k:
        kpark_addr(o, S, 30)
        o.fn(lambda a: a.lg(f"ds_read_b128 {vr(V_K, 4)}, v30 offset:{r * 1024}", tag=("kpr", r + 1)))
    return o


def main(a, S, NT):
    R = 3 if NT == 5 else 2
    nbu = 9 * R
    ncs = (NT * 9 + 1) // 2
    paths = [(0, nbu + ncs, None)] if NT == 4 else [(0, 18, None), (18, nbu + ncs, 0), (18, nbu + ncs, 1)]
    saved = None
    for (n0, n1, hsel) in paths:
        if hsel == 0:
            a.I(f"s_cmp_eq_u32 s{S.S_HALF}, 0")
            a.I(f"s_cbranch_scc0 .Lssm_h1")
            saved = (list(a.vmq), list(a.lgq), dict(a.mfma_at), a.ic)
        if hsel == 1:
            a.label(".Lssm_h1")
            a.vmq, a.lgq, a.mfma_at, a.ic = list(saved[0]), list(saved[1]), dict(saved[2]), saved[3]
        emit(a, S, NT, R, nbu, ncs, n0, n1, hsel)


def emit(a, S, NT, R, nbu, ncs, n0, n1, hsel):
    ntot = nbu + ncs
    pre, post, fill = {}, {}, {}
    light = (hsel == 1)
    rounds = range(R - 1) if light else range(R)
    HB = ACC[R & 1]

    for r in range(3):
        S.spread(fill, const_ops(S, r), 8 * (2 * r) + 1, 8 * (2 * r + 2))
    for r in rounds:
        b = 9 * (r + 1)
        relaxed = (NT == 5 and r == 2)
        S.spread(fill, s1_ops(S, r), 8 * b + 1, 8 * b + 7)
        pre.setdefault(b + 1, []).append(lambda a, r=r: a.wait(lg=("seg", r)))
        S.spread(fill, s2_ops(S, r), 8 * (b + 1), 8 * (b + 1) + 7)
        post.setdefault(b + 2, []).append(pub_op(S, r))
        post.setdefault(b + 4, []).extend(flag_ops(S, r))
        p = b + (9 if relaxed else 5)
        post.setdefault(p + 1, []).extend(poll_issue_ops(S, r))
        post.setdefault(p + 2, []).append(poll_check(S, r))
        S.spread(fill, pow256_ops(), 8 * (p + 2), 8 * (p + 2) + 6)
        last = 8 * (p + 3) + 7 + (8 if relaxed else 0)
        S.spread(fill, s4_ops(S, r, reload_k=(r + 1 in rounds)), 8 * (p + 3), last)
        pre.setdefault(last // 8 + 1, []).append(lambda a, r=r: a.wait(lg=("hw", r)))
    if light:
        pass

    def c_dma_addr(a):
        a.I(f"s_lshl_b32 s{S.S_T1}, s{S.S_TG}, 4")
        a.I(f"v_lshrrev_b32 v{V_DM}, 2, v0")
        a.I(f"v_add_u32 v{V_DM}, s{S.S_T1}, v{V_DM}")
        a.I(f"v_mul_u32_u24 v{V_DM}, 0x480, v{V_DM}")
        a.I(f"v_lshrrev_b32 v{V_DM + 1}, 4, v0")
        a.I(f"v_xor_b32 v{V_DM + 1}, v{V_DM + 1}, v0")
        a.I(f"v_and_b32 v{V_DM + 1}, 3, v{V_DM + 1}")
        a.I(f"v_lshl_add_u32 v{V_DM}, v{V_DM + 1}, 4, v{V_DM}")

    def c_rd_addr(a):
        a.I(f"s_lshl_b32 s{S.S_T1}, s{S.S_HALF}, 11")
        a.I(f"s_add_u32 s{S.S_T1}, s{S.S_T1}, {S.RING}")
        a.I(f"v_bfe_u32 v{V_RD}, v0, 2, 2")
        a.I(f"v_lshrrev_b32 v{V_RD + 1}, 5, v0")
        a.I(f"v_xor_b32 v{V_RD}, v{V_RD}, v{V_RD + 1}")
        a.I(f"v_and_b32 v{V_RD + 1}, 31, v0")
        a.I(f"v_lshlrev_b32 v{V_RD + 1}, 6, v{V_RD + 1}")
        a.I(f"v_add_u32 v{V_RD + 1}, s{S.S_T1}, v{V_RD + 1}")
        a.I(f"v_lshl_add_u32 v{V_RD}, v{V_RD}, 4, v{V_RD + 1}")
        a.I(f"v_xor_b32 v{V_RD + 1}, 32, v{V_RD}")

    def h_addr(a):
        d, t = V_RD + 2, V_RD + 3
        a.I(f"v_bfe_u32 v{t}, v0, 2, 2")
        a.I(f"v_xor_b32 v{d}, s{S.S_TG}, v{t}")
        a.I(f"v_lshlrev_b32 v{d}, 6, v{d}")
        a.I(f"v_lshl_add_u32 v{d}, v{t}, 8, v{d}")
        a.I(f"v_lshrrev_b32 v{t}, 5, v0")
        a.I(f"v_lshl_add_u32 v{d}, v{t}, 11, v{d}")
        a.I(f"v_bfe_u32 v{t}, v0, 4, 1")
        a.I(f"v_lshl_add_u32 v{d}, v{t}, 5, v{d}")
        a.I(f"v_and_b32 v{t}, 3, v0")
        a.I(f"v_lshl_add_u32 v{d}, v{t}, 3, v{d}")
        a.I(f"v_add_u32 v{t}, 0x10000, v{d}")

    def h_rd(t, f):
        def g(a):
            mat, u = f >> 1, f & 1
            ad, off = (V_RD + 2, t * 16384) if t < 4 else (V_RD + 3, 0)
            for jj in range(2):
                a.lg(f"ds_read_b64_tr_b16 {vr(HB + 16 * (t & 1) + 4 * f + 2 * jj, 2)}, v{ad} "
                     f"offset:{off + mat * 8192 + u * 4096 + jj * 1024}", tag=("h", t, f))
        return g
    pre.setdefault(nbu - 3, []).append(c_dma_addr)
    post.setdefault(nbu - 1, []).append(c_rd_addr)
    post.setdefault(nbu, []).insert(0, h_addr)
    for f in range(4):
        post[nbu].append(h_rd(0, f))
    for t in range(1, NT):
        rr = t >> 1
        relaxed = (NT == 5 and rr == 2)
        vis = 9 * (rr + 1) + (14 if relaxed else 9)
        slot0 = max(8 * nbu + 36 * t - 8, 8 * vis)
        assert slot0 <= 8 * nbu + 36 * t, (NT, t, slot0)
        for f in range(4):
            if slot0 == 8 * vis:
                post.setdefault(vis, []).append(h_rd(t, f))
            else:
                fill.setdefault(slot0 + f, []).append(h_rd(t, f))
    base_last = 8 * nbu + 36 * (NT - 1)
    fill.setdefault(base_last, []).append(lambda a: S.slab_store_addr(a))
    for dp in range(8):
        S.spread(fill, S.out_ops(S.V_XN + 16 * dp, dp), base_last + 4 * (dp + 1) + 1, base_last + 4 * (dp + 1) + 3)

    for n in range(n0, n1):
        a.c(f"ssm NT={NT} h={hsel} stage {n}")
        if n == nbu:
            S.stamp(a, 3)
        for f in pre.get(n, []):
            f(a)
        if n + 1 < ntot:
            a.wait(vm=("dma", n + 1))
        a.I("s_barrier")
        for f in post.get(n, []):
            f(a)
        m = n + 3
        if m < nbu:
            if not (light and m >= 18):
                bu_dma(a, S, m)
        elif m < ntot:
            c_dma(a, S, m, m - nbu, NT)
        if n < nbu:
            r, kb = divmod(n, 9)
            acc = ACC[r & 1]
            for ks in range(4):
                for mat in range(2):
                    if not (light and r == 2):
                        a.wait(lg=("B", n, ks, mat))
                        a.mfma(acc + 16 * mat, S.V_XN + 4 * (4 * kb + ks), V_B + (ks & 1) * 8 + mat * 4,
                               first=(kb == 0 and ks == 0))
                    if mat == 1:
                        if ks < 2:
                            if not (light and r == 2):
                                bu_rd(a, n, ks + 2)
                        elif n + 1 < nbu:
                            if not (light and r == 2):
                                bu_rd(a, n + 1, ks - 2)
                        else:
                            c_rd(a, nbu, 2 * (ks - 2), NT)
                            c_rd(a, nbu, 2 * (ks - 2) + 1, NT)
                    for f in fill.get(8 * n + 2 * ks + mat, []):
                        f(a)
        else:
            for j in range(8):
                i = 8 * (n - nbu) + j
                un, f4 = divmod(i, 4)
                if un < NT * 9:
                    t, dp = divmod(un, 9)
                    a.wait(lg=("C", i))
                    if dp == 0:
                        a.wait(lg=("h", t, f4))
                    a.mfma(S.V_XN + 16 * dp, V_B + 4 * f4, HB + 16 * (t & 1) + 4 * f4, first=(t == 0 and f4 == 0))
                    c_rd(a, nbu, i + 4, NT)
                for f in fill.get(8 * n + j, []):
                    f(a)
    if n1 == ntot:
        for f in S.out_ops(S.V_XN + 16 * 8, 8):
            f(a)
        S.stamp(a, 4)
        a.I("s_endpgm")
```

```python
import sys
from asmlib import Asm, vr, sr

NAME = "recurrent_scan__ssm_conv_s5__dense_activation_mish__prompt"
K1 = NAME + "_kernel"
K2 = "fin_kernel"

OPT = dict(stamps=False, store_flags="", prio=False)

WS_AGG = 0
AGG_BYTES = 16 * 4608
WS_STATS = 1 << 17
WS_SLAB = 1 << 20
WS_STAMP = 48 << 20
STAMP_V = [54]
WS_SIZE = 268435456

RING = 98304
LDS_TOTAL = 163840

S_W, S_TG, S_HALF, S_TILE, S_ROLE, S_M0B, S_T0, S_T1 = 4, 5, 6, 7, 8, 9, 10, 11
S_ONES, S_MASK, S_X9216, S_B1, S_B2 = 12, 13, 14, 15, 72
P_X, P_LRE, P_LIM, P_BRE, P_BIM, P_CRE, P_CIM, P_LDT = 16, 18, 20, 22, 24, 26, 28, 30
P_DSK, P_BX, P_W1, P_B1, P_W2, P_OUT, P_DBG, P_WS = 32, 34, 36, 38, 40, 42, 44, 46
R_X, R_WA, R_WB, R_WS, R_MISC, R_DBG = 48, 52, 56, 60, 64, 68
S_T2, S_T3, S_T4, S_T5 = 73, 74, 75, 76
S_NT, S_CH0, S_SIDX = 77, 78, 79
S_ST = 80
R_M2, R_M3 = 84, 88

V_LANE = 0
V_XN = 112
V_ACC = (80, 96)
V_A = 64
V_BIAS = 56
V_T = 32
V_P = 24
V_AD1, V_AD2, V_DMA1, V_DMA2, V_ST, V_ACTW, V_ACTR = 1, 2, 3, 4, 5, 6, 7


def srd(a, dst, ptr, nbytes):
    a.I(f"s_mov_b32 s{dst}, s{ptr}")
    a.I(f"s_and_b32 s{dst + 1}, s{ptr + 1}, 0xffff")
    a.I(f"s_mov_b32 s{dst + 2}, {nbytes}")
    a.I(f"s_mov_b32 s{dst + 3}, 0x00020000")


def stamp(a, idx):
    if not OPT["stamps"]:
        return
    a.I(f"s_memtime s[{S_ST}:{S_ST + 1}]")
    a.I("s_waitcnt lgkmcnt(0)")
    a.lgq = []
    sv = STAMP_V[0]
    a.I(f"v_mov_b32 v{sv + 1}, s{S_ST}")
    a.I(f"v_mov_b32 v{sv}, s82")
    a.vm(f"buffer_store_dword v{sv + 1}, v{sv}, s[{R_WS}:{R_WS + 3}], 0 offen offset:{idx * 4}")


def prologue(a, early):
    a.I("s_cmp_ge_u32 s2, 256")
    a.I("s_cbranch_scc1 .Lk1_end")
    a.I("s_load_dwordx16 s[16:31], s[0:1], 0")
    a.I("s_load_dwordx16 s[32:47], s[0:1], 64")
    a.I("v_lshrrev_b32 v1, 6, v0")
    a.I("v_and_b32 v0, 63, v0")
    a.I(f"v_readfirstlane_b32 s{S_W}, v1")
    a.I("s_and_b32 s3, s2, 7")
    a.I(f"s_lshr_b32 s{S_T0}, s2, 3")
    a.I(f"s_and_b32 s{S_TILE}, s{S_T0}, 7")
    a.I(f"s_and_b32 s{S_T1}, s3, 1")
    a.I(f"s_lshl_b32 s{S_T1}, s{S_T1}, 3")
    a.I(f"s_add_u32 s{S_TILE}, s{S_TILE}, s{S_T1}")
    a.I(f"s_lshr_b32 s{S_T0}, s{S_T0}, 3")
    a.I(f"s_lshr_b32 s3, s3, 1")
    a.I(f"s_and_b32 s{S_TG}, s{S_W}, 3")
    a.I(f"s_lshr_b32 s{S_HALF}, s{S_W}, 2")
    a.I(f"s_lshl_b32 s{S_M0B}, s{S_W}, 10")
    a.I(f"s_add_u32 s{S_M0B}, s{S_M0B}, {RING}")
    a.I(f"s_mov_b32 s{S_ONES}, 0x3f803f80")
    a.I(f"s_mov_b32 s{S_MASK}, 0xffff0000")
    a.I(f"s_mov_b32 s{S_X9216}, 9216")
    a.I(f"s_lshl_b32 s{S_T1}, s{S_TILE}, 7")
    a.I(f"s_lshl_b32 s{S_T2}, s{S_W}, 4")
    a.I(f"s_add_u32 s{S_T1}, s{S_T1}, s{S_T2}")
    a.I("v_lshrrev_b32 v8, 3, v0")
    a.I("v_and_b32 v9, 7, v0")
    a.I(f"v_add_u32 v10, s{S_T1}, v8")
    a.I("v_mul_u32_u24 v11, 0x480, v10")
    a.I("v_lshl_add_u32 v11, v9, 4, v11")
    a.I("s_waitcnt lgkmcnt(0)")
    srd(a, R_X, P_X, 2359296)
    srd(a, R_WS, P_WS, WS_SIZE)
    if OPT["stamps"]:
        a.I(f"s_lshl_b32 s82, s2, 3")
        a.I(f"s_add_u32 s82, s82, s{S_W}")
        a.I(f"s_lshl_b32 s82, s82, 7")
        a.I(f"s_add_u32 s82, s82, {WS_STAMP}")
    XR = V_XN
    for sg in range(2):
        for i in range(9):
            so = "0" if sg == 0 else f"s{S_X9216}"
            a.vm(f"buffer_load_dwordx4 {vr(XR + (sg * 9 + i) * 4, 4)}, v11, s[{R_X}:{R_X + 3}], {so} offen offset:{i * 128}",
                 tag=("x", sg, i))
    stamp(a, 0)
    a.I(f"s_cmp_lt_u32 s{S_T0}, 3")
    a.I("s_cbranch_scc0 .Lk1_ssm")
    a.I(f"s_mul_i32 s{S_ROLE}, s3, 3")
    a.I(f"s_add_u32 s{S_ROLE}, s{S_ROLE}, s{S_T0}")


def layernorm(a, ssm):
    XR = V_XN
    T = V_T
    a.I(f"s_lshr_b32 s{S_T1}, s{S_W}, 1")
    a.I(f"s_mul_i32 s{S_T1}, s{S_T1}, 36864")
    a.I(f"s_and_b32 s{S_T2}, s{S_W}, 1")
    a.I(f"s_lshl_b32 s{S_T2}, s{S_T2}, 4")
    a.I(f"v_add_u32 v12, s{S_T2}, v8")
    a.I("v_lshlrev_b32 v13, 1, v9")
    a.I("v_xor_b32 v12, v12, v13")
    a.I("v_lshlrev_b32 v12, 4, v12")
    a.I("v_lshrrev_b32 v13, 1, v9")
    a.I("v_lshl_add_u32 v12, v13, 10, v12")
    a.I("v_and_b32 v13, 1, v9")
    a.I("v_lshl_add_u32 v12, v13, 9, v12")
    a.I(f"v_add_u32 v12, s{S_T1}, v12")
    a.I("v_xor_b32 v13, 0x80, v12")
    a.I("v_and_b32 v18, 31, v0")
    a.I("v_lshrrev_b32 v19, 5, v0")
    if ssm:
        a.I("v_bfe_u32 v20, v18, 2, 1")
        a.I("v_lshlrev_b32 v20, 4, v20")
        a.I("v_lshrrev_b32 v21, 3, v18")
        a.I("v_lshl_add_u32 v20, v21, 2, v20")
        a.I("v_and_b32 v21, 3, v18")
        a.I("v_add_u32 v20, v20, v21")
    else:
        a.I("v_mov_b32 v20, v18")
    a.I("v_lshlrev_b32 v21, 1, v19")
    a.I("v_xor_b32 v20, v20, v21")
    a.I(f"s_mul_i32 s{S_T1}, s{S_TG}, 36864")
    a.I("v_lshlrev_b32 v21, 9, v19")
    a.I(f"v_add_u32 v21, s{S_T1}, v21")
    for u in range(4):
        a.I(f"v_xor_b32 v22, {4 * u}, v20")
        a.I(f"v_lshl_add_u32 v{14 + u}, v22, 4, v21")
    for sg in range(2):
        sA, sB, qA, qB = T + sg * 4, T + sg * 4 + 1, T + sg * 4 + 2, T + sg * 4 + 3
        for i in range(9):
            a.wait(vm=("x", sg, i))
            for j in range(4):
                r = XR + (sg * 9 + i) * 4 + j
                s, q = (sA, qA) if j % 2 == 0 else (sB, qB)
                first = (i == 0 and j < 2)
                a.I(f"v_dot2_f32_bf16 v{s}, v{r}, s{S_ONES}, {'0' if first else 'v%d' % s}")
                a.I(f"v_dot2_f32_bf16 v{q}, v{r}, v{r}, {'0' if first else 'v%d' % q}")
        a.nop(3)
        a.I(f"v_add_f32 v{sA}, v{sA}, v{sB}")
        a.I(f"v_add_f32 v{qA}, v{qA}, v{qB}")
    red = [T, T + 2, T + 4, T + 6]
    for pat in ("quad_perm:[1,0,3,2]", "quad_perm:[2,3,0,1]", "row_half_mirror"):
        a.nop(1)
        for r in red:
            a.I(f"v_add_f32_dpp v{r}, v{r}, v{r} {pat} row_mask:0xf bank_mask:0xf")
    inv = "0x3ae38e39"
    for sg in range(2):
        s, q = T + sg * 4, T + sg * 4 + 2
        m, r = T + 8 + sg * 2, T + 9 + sg * 2
        t1, t2 = T + 12, T + 13
        a.I(f"v_mul_f32 v{s}, {inv}, v{s}")
        a.I(f"v_mul_f32 v{q}, {inv}, v{q}")
        a.I(f"v_fma_f32 v{q}, -v{s}, v{s}, v{q}")
        a.I(f"v_max_f32 v{q}, 0, v{q}")
        a.I(f"v_cvt_pk_bf16_f32 v{m}, v{s}, v{q}")
        a.I(f"v_and_b32 v{q}, s{S_MASK}, v{m}")
        a.I(f"v_lshlrev_b32 v{m}, 16, v{m}")
        a.I(f"v_add_f32 v{q}, 0x3727c5ac, v{q}")
        a.I(f"v_cvt_pk_bf16_f32 v{q}, v{q}, v{q}")
        a.I(f"v_and_b32 v{q}, s{S_MASK}, v{q}")
        a.I(f"v_sqrt_f32 v{q}, v{q}")
        a.nop(1)
        a.I(f"v_cvt_pk_bf16_f32 v{q}, v{q}, v{q}")
        a.I(f"v_and_b32 v{q}, s{S_MASK}, v{q}")
        a.I(f"v_rcp_f32 v{r}, v{q}")
        a.nop(1)
        a.I(f"v_fma_f32 v{t1}, -v{q}, v{r}, 1.0")
        a.I(f"v_fma_f32 v{r}, v{r}, v{t1}, v{r}")
    if ssm:
        skip = a.newlab("nostat")
        a.I(f"s_cmp_lg_u32 s{S_ROLE}, 0")
        a.I(f"s_cbranch_scc1 {skip}")
        a.I("v_cmp_eq_u32 vcc, 0, v9")
        a.I(f"v_lshlrev_b32 v{T + 12}, 3, v10")
        a.I(f"v_add_u32 v{T + 12}, {WS_STATS}, v{T + 12}")
        a.I("s_and_saveexec_b64 s[92:93], vcc")
        a.I(f"buffer_store_dwordx2 {vr(T + 8, 2)}, v{T + 12}, s[{R_WS}:{R_WS + 3}], 0 offen")
        a.I(f"buffer_store_dwordx2 {vr(T + 10, 2)}, v{T + 12}, s[{R_WS}:{R_WS + 3}], 0 offen offset:64")
        a.I("s_mov_b64 exec, s[92:93]")
        a.label(skip)
    for sg in range(2):
        m, r = T + 8 + sg * 2, T + 9 + sg * 2
        for i in range(9):
            base = XR + (sg * 9 + i) * 4
            lo = [T + 14 + 2 * j for j in range(4)]
            for j in range(4):
                a.I(f"v_lshlrev_b32 v{lo[j]}, 16, v{base + j}")
                a.I(f"v_and_b32 v{lo[j] + 1}, s{S_MASK}, v{base + j}")
            for j in range(4):
                a.I(f"v_sub_f32 v{lo[j]}, v{lo[j]}, v{m}")
                a.I(f"v_sub_f32 v{lo[j] + 1}, v{lo[j] + 1}, v{m}")
            for j in range(4):
                a.I(f"v_cvt_pk_bf16_f32 v{base + j}, v{lo[j]}, v{lo[j] + 1}")
            for j in range(4):
                a.I(f"v_lshlrev_b32 v{lo[j]}, 16, v{base + j}")
                a.I(f"v_and_b32 v{lo[j] + 1}, s{S_MASK}, v{base + j}")
            for j in range(4):
                a.I(f"v_mul_f32 v{lo[j]}, v{lo[j]}, v{r}")
                a.I(f"v_mul_f32 v{lo[j] + 1}, v{lo[j] + 1}, v{r}")
            for j in range(4):
                a.I(f"v_cvt_pk_bf16_f32 v{base + j}, v{lo[j]}, v{lo[j] + 1}")
            a.lg(f"ds_write_b128 v{12 + sg}, {vr(base, 4)} offset:{i * 4096}")
    a.wait0(lg=True)
    a.I("s_barrier")
    for s in range(36):
        a.lg(f"ds_read_b128 {vr(V_XN + 4 * s, 4)}, v{14 + (s & 3)} offset:{s * 1024}")


def mlp_dma(a, n):
    if n >= 108:
        return
    slot = (n + 6) & 7
    a.I(f"s_add_u32 m0, s{S_M0B}, {slot * 8192}")
    if n < 54:
        p, kb = divmod(n, 9)
        a.I(f"s_add_u32 s{S_T0}, s{S_B1}, {kb * 64 * 9216 + p * 128}")
        a.vm(f"buffer_load_dwordx4 v{V_DMA1}, s[{R_WA}:{R_WA + 3}], s{S_T0} offen lds", tag=("dma", n))
    else:
        dp, fb = divmod(n - 54, 6)
        a.I(f"s_add_u32 s{S_T0}, s{S_B2}, {fb * 64 * 1152 + dp * 128}")
        a.vm(f"buffer_load_dwordx4 v{V_DMA2}, s[{R_WB}:{R_WB + 3}], s{S_T0} offen lds", tag=("dma", n))


def mlp_tr(a, n, ks):
    if n >= 108:
        return
    slot = (n + 6) & 7
    ad, js = (V_AD1, 512) if n < 54 else (V_AD2, 1024)
    for jj in range(2):
        a.lg(f"ds_read_b64_tr_b16 {vr(V_A + 4 * ks + 2 * jj, 2)}, v{ad} offset:{slot * 8192 + ks * 2048 + jj * js}",
             tag=("A", n, ks))


def mish_ops(acc, bias, p):
    ops = []
    T = V_T

    def op(s):
        ops.append(lambda a, s=s: a.I(s))
    ops.append(lambda a: a.need_acc(acc))
    for g in range(4):
        e = [T + 8 * (g & 1) + i for i in range(4)]
        t = [T + 8 * (g & 1) + 4 + i for i in range(4)]
        h = [acc + 4 * g + i for i in range(4)]
        for i in range(4):
            op(f"v_add_f32_dpp v{h[i]}, v{bias}, v{h[i]} row_newbcast:{4 * g + i} row_mask:0xf bank_mask:0xf")
        for i in range(4):
            op(f"v_mul_f32 v{e[i]}, 0x3fb8aa3b, v{h[i]}")
        for i in range(4):
            op(f"v_exp_f32 v{e[i]}, v{e[i]}")
        for i in range(4):
            op(f"v_fma_f32 v{t[i]}, v{e[i]}, -0.5, -1.0")
        for i in range(4):
            op(f"v_fma_f32 v{t[i]}, v{e[i]}, v{t[i]}, -1.0")
        for i in range(4):
            op(f"v_rcp_f32 v{t[i]}, v{t[i]}")
        for i in range(4):
            op(f"v_fma_f32 v{h[i]}, v{h[i]}, v{t[i]}, v{h[i]}")
        op(f"v_cvt_pk_bf16_f32 v{V_P + 2 * g}, v{h[0]}, v{h[1]}")
        op(f"v_cvt_pk_bf16_f32 v{V_P + 2 * g + 1}, v{h[2]}, v{h[3]}")
        if g & 1:
            aa = g >> 1
            ops.append(lambda a, aa=aa: a.lg(
                f"ds_write_b128 v{V_ACTW}, {vr(V_P + 4 * aa, 4)} offset:{(4 * p + aa) * 1024}", tag=("actw", p)))
    return ops


def out_ops(acc, dp):
    ops = []

    def op(s):
        ops.append(lambda a, s=s: a.I(s))
    ops.append(lambda a: a.need_acc(acc))
    for aa in range(2):
        for j in range(4):
            op(f"v_cvt_pk_bf16_f32 v{V_P + 4 * aa + j}, v{acc + 8 * aa + 2 * j}, v{acc + 8 * aa + 2 * j + 1}")
        op(f"s_mov_b32 s{S_T1}, {dp * 65536 + aa * 16384}")
        ops.append(lambda a, aa=aa: a.vm(
            f"buffer_store_dwordx4 {vr(V_P + 4 * aa, 4)}, v{V_ST}, s[{R_WS}:{R_WS + 3}], s{S_T1} offen {OPT['store_flags']}"))
    return ops


def spread(fill, ops, first, last):
    ns = last - first + 1
    n = len(ops)
    k = 0
    for s in range(ns):
        upto = (n * (s + 1) + ns - 1) // ns
        while k < upto:
            fill.setdefault(first + s, []).append(ops[k])
            k += 1


def slab_store_addr(a):
    a.I(f"s_lshl_b32 s{S_T1}, s{S_TILE}, 2")
    a.I(f"s_add_u32 s{S_T1}, s{S_T1}, s{S_TG}")
    a.I(f"s_mul_i32 s{S_T1}, s{S_T1}, 18")
    a.I(f"s_add_u32 s{S_T1}, s{S_T1}, s{S_HALF}")
    a.I(f"s_lshl_b32 s{S_T1}, s{S_T1}, 5")
    a.I(f"s_add_u32 s{S_T1}, s{S_T1}, s{S_SIDX}")
    a.I(f"s_lshl_b32 s{S_T1}, s{S_T1}, 10")
    a.I(f"s_add_u32 s{S_T1}, s{S_T1}, {WS_SLAB}")
    a.I(f"v_lshlrev_b32 v{V_ST}, 4, v0")
    a.I(f"v_add_u32 v{V_ST}, s{S_T1}, v{V_ST}")


def mlp(a):
    srd(a, R_WA, P_W1, 5308416)
    srd(a, R_WB, P_W2, 5308416)
    srd(a, R_MISC, P_B1, 9216)
    a.I(f"s_mul_i32 s{S_B1}, s{S_ROLE}, 768")
    a.I(f"s_mul_i32 s{S_B2}, s{S_ROLE}, {384 * 1152}")
    a.I(f"s_mov_b32 s{S_SIDX}, s{S_ROLE}")
    a.I(f"s_lshl_b32 s{S_T1}, s{S_W}, 3")
    a.I(f"v_add_u32 v20, s{S_T1}, v8")
    a.I("v_bfe_u32 v21, v0, 4, 1")
    a.I("v_lshlrev_b32 v21, 2, v21")
    a.I("v_xor_b32 v21, v21, v9")
    a.I("v_lshlrev_b32 v21, 4, v21")
    a.I("v_mul_u32_u24 v22, 0x2400, v20")
    a.I(f"v_add_u32 v{V_DMA1}, v22, v21")
    a.I("v_mul_u32_u24 v22, 0x480, v20")
    a.I(f"v_add_u32 v{V_DMA2}, v22, v21")
    mlp_dma(a, 0)
    mlp_dma(a, 1)
    a.I("v_bfe_u32 v20, v0, 2, 2")
    a.I("v_lshlrev_b32 v20, 3, v20")
    a.I("v_lshrrev_b32 v21, 5, v0")
    a.I("v_lshl_add_u32 v20, v21, 2, v20")
    a.I("v_and_b32 v21, 3, v0")
    a.I("v_add_u32 v20, v20, v21")
    a.I(f"s_lshl_b32 s{S_T1}, s{S_HALF}, 5")
    a.I(f"v_add_u32 v20, s{S_T1}, v20")
    a.I("v_lshlrev_b32 v20, 1, v20")
    for p in range(6):
        a.vm(f"buffer_load_ushort v{V_BIAS + p}, v20, s[{R_MISC}:{R_MISC + 3}], s{S_B1} offen offset:{p * 128}", tag=("bias", p))
    a.I("v_bfe_u32 v20, v0, 2, 2")
    a.I("v_lshrrev_b32 v21, 1, v20")
    a.I(f"v_xor_b32 v21, s{S_HALF}, v21")
    a.I("v_lshlrev_b32 v21, 6, v21")
    a.I("v_bfe_u32 v22, v0, 4, 1")
    a.I("v_lshl_add_u32 v21, v22, 5, v21")
    a.I("v_and_b32 v22, 3, v0")
    a.I("v_lshl_add_u32 v21, v22, 3, v21")
    a.I("v_lshl_add_u32 v21, v20, 7, v21")
    a.I(f"v_add_u32 v21, {RING}, v21")
    a.I("v_lshrrev_b32 v22, 5, v0")
    a.I(f"v_lshl_add_u32 v{V_AD1}, v22, 10, v21")
    a.I(f"v_lshl_add_u32 v{V_AD2}, v22, 9, v21")
    a.I(f"s_mul_i32 s{S_T1}, s{S_TG}, 24576")
    a.I(f"v_lshlrev_b32 v{V_ACTR}, 4, v0")
    a.I(f"v_add_u32 v{V_ACTR}, s{S_T1}, v{V_ACTR}")
    a.I(f"s_lshl_b32 s{S_T1}, s{S_HALF}, 11")
    a.I(f"v_add_u32 v{V_ACTW}, s{S_T1}, v{V_ACTR}")
    slab_store_addr(a)
    layernorm(a, ssm=False)
    stamp(a, 1)
    for p in range(6):
        a.wait(vm=("bias", p))
        a.I(f"v_lshlrev_b32 v{V_BIAS + p}, 16, v{V_BIAS + p}")
    a.wait(vm=("dma", 0))
    a.wait0(lg=True)
    a.I("s_barrier")
    stamp(a, 2)
    for n in range(2, 7):
        mlp_dma(a, n)
    for ks in range(4):
        mlp_tr(a, 0, ks)

    fill = {}
    for p in range(5):
        spread(fill, mish_ops(V_ACC[p & 1], V_BIAS + p, p), 36 * (p + 1) + 2, 36 * (p + 1) + 33)
    spread(fill, mish_ops(V_ACC[1], V_BIAS + 5, 5), 216 + 2, 216 + 14)

    def actread(kap):
        return lambda a: a.lg(f"ds_read_b128 {vr(V_XN + 4 * kap, 4)}, v{V_ACTR} offset:{kap * 1024}", tag=("act", kap))
    for kap in range(16):
        fill.setdefault(180 + 18 + kap, []).append(actread(kap))
    for kap in range(16, 20):
        fill.setdefault(216 + kap - 16, []).append(actread(kap))
    for kap in range(20, 24):
        fill.setdefault(216 + 16 + (kap - 20) // 2, []).append(actread(kap))
    for dp in range(8):
        spread(fill, out_ops(V_ACC[dp & 1], dp), 216 + 24 * (dp + 1) + 3, 216 + 24 * (dp + 1) + 10)

    for n in range(108):
        a.c(f"stage {n}")
        if n == 54:
            stamp(a, 3)
            a.wait(lg=("actw", 4))
        if n == 58:
            a.wait(lg=("actw", 5))
        if n + 1 < 108:
            a.wait(vm=("dma", n + 1))
            a.I("s_barrier")
        mlp_dma(a, n + 7)
        for ks in range(4):
            i = 4 * n + ks
            if n < 54:
                p, kb = divmod(n, 9)
                acc, b, first = V_ACC[p & 1], V_XN + 4 * (4 * kb + ks), (kb == 0 and ks == 0)
                a.wait(lg=("A", n, ks))
            else:
                dp, fb = divmod(n - 54, 6)
                kap = 4 * fb + ks
                acc, b, first = V_ACC[dp & 1], V_XN + 4 * kap, (fb == 0 and ks == 0)
                a.wait(lg=("A", n, ks))
                if dp == 0:
                    a.wait(lg=("act", kap))
            a.mfma(acc, V_A + 4 * ks, b, first)
            mlp_tr(a, n + 1, ks)
            for f in fill.get(i, []):
                f(a)
    for f in out_ops(V_ACC[0], 8):
        f(a)
    stamp(a, 4)
    a.I("s_endpgm")


def k2(a):
    a.raw(".p2align 8")
    a.raw(f".globl {K2}")
    a.raw(f".type {K2},@function")
    a.label(K2)
    a.I("s_cmp_ge_u32 s2, 576")
    a.I("s_cbranch_scc1 .Lk2_end")
    a.I("s_load_dwordx2 s[16:17], s[0:1], 0")
    a.I("s_load_dwordx2 s[18:19], s[0:1], 64")
    a.I("s_load_dwordx2 s[20:21], s[0:1], 104")
    a.I("s_load_dwordx2 s[22:23], s[0:1], 120")
    a.I("v_lshrrev_b32 v1, 6, v0")
    a.I("v_and_b32 v0, 63, v0")
    a.I("v_readfirstlane_b32 s4, v1")
    a.I("s_lshl_b32 s5, s2, 2")
    a.I("s_add_u32 s5, s5, s4")
    a.I("s_and_b32 s6, s5, 1")
    a.I("s_lshr_b32 s7, s5, 1")
    a.I("s_mul_i32 s8, s7, 3641")
    a.I("s_lshr_b32 s8, s8, 16")
    a.I("s_mul_i32 s9, s8, 18")
    a.I("s_sub_u32 s9, s7, s9")
    a.I("s_lshl_b32 s10, s5, 14")
    a.I(f"s_add_u32 s10, s10, {WS_SLAB}")
    a.I("v_lshlrev_b32 v1, 4, v0")
    a.I("v_add_u32 v1, s10, v1")
    a.I("v_and_b32 v2, 31, v0")
    a.I("s_lshl_b32 s11, s8, 5")
    a.I("v_add_u32 v2, s11, v2")
    a.I("v_lshrrev_b32 v3, 5, v0")
    a.I("s_lshl_b32 s12, s9, 5")
    a.I("s_lshl_b32 s13, s6, 4")
    a.I("s_add_u32 s12, s12, s13")
    a.I("v_lshl_add_u32 v3, v3, 2, s12")
    a.I("v_mul_u32_u24 v4, 576, v2")
    a.I("v_add_u32 v4, v4, v3")
    a.I("v_lshlrev_b32 v5, 1, v4")
    a.I("v_lshlrev_b32 v6, 2, v4")
    a.I("v_lshlrev_b32 v7, 1, v3")
    a.I("v_lshlrev_b32 v8, 3, v2")
    a.I(f"v_add_u32 v8, {WS_STATS}, v8")
    a.I("s_mov_b32 s14, 0xffff0000")
    a.I("s_waitcnt lgkmcnt(0)")
    srd(a, 24, 22, WS_SIZE)
    srd(a, 28, 16, 2359296)
    srd(a, 32, 18, 1152)
    srd(a, 36, 20, 4718592)
    SL = 64
    for s in range(16):
        so = "0"
        if s >= 4:
            a.I(f"s_mov_b32 s{40 + s // 4}, {(s // 4) * 4096}") if s % 4 == 0 else None
            so = f"s{40 + s // 4}"
        a.vm(f"buffer_load_dwordx4 {vr(SL + 4 * s, 4)}, v1, s[24:27], {so} offen offset:{(s % 4) * 1024}", tag=("sl", s))
    a.vm("buffer_load_dwordx2 v[10:11], v5, s[28:31], 0 offen", tag="x0")
    a.vm("buffer_load_dwordx2 v[12:13], v5, s[28:31], 0 offen offset:16", tag="x1")
    a.vm("buffer_load_dwordx2 v[14:15], v8, s[24:27], 0 offen", tag="st")
    a.vm("buffer_load_dwordx2 v[16:17], v7, s[32:35], 0 offen", tag="d0")
    a.vm("buffer_load_dwordx2 v[18:19], v7, s[32:35], 0 offen offset:16", tag="d1")
    O, Y = 20, 28
    for s in range(16):
        a.wait(vm=("sl", s))
        dst = O if s < 12 else Y
        first = s in (0, 12)
        for j in range(4):
            r = SL + 4 * s + j
            if first:
                a.I(f"v_lshlrev_b32 v{dst + 2 * j}, 16, v{r}")
                a.I(f"v_and_b32 v{dst + 2 * j + 1}, s14, v{r}")
            else:
                a.I(f"v_lshlrev_b32 v{36 + 2 * j}, 16, v{r}")
                a.I(f"v_and_b32 v{37 + 2 * j}, s14, v{r}")
        if not first:
            for j in range(8):
                a.I(f"v_add_f32 v{dst + j}, v{dst + j}, v{36 + j}")
    a.wait(vm="d1")
    X, XN, DS = 36, 44, 52
    for j in range(4):
        a.I(f"v_lshlrev_b32 v{X + 2 * j}, 16, v{10 + j}")
        a.I(f"v_and_b32 v{X + 2 * j + 1}, s14, v{10 + j}")
        a.I(f"v_lshlrev_b32 v{DS + 2 * j}, 16, v{16 + j}")
        a.I(f"v_and_b32 v{DS + 2 * j + 1}, s14, v{16 + j}")

    def rnd(base):
        for j in range(4):
            a.I(f"v_cvt_pk_bf16_f32 v{60 + j}, v{base + 2 * j}, v{base + 2 * j + 1}")
        for j in range(4):
            a.I(f"v_lshlrev_b32 v{base + 2 * j}, 16, v{60 + j}")
            a.I(f"v_and_b32 v{base + 2 * j + 1}, s14, v{60 + j}")
    for j in range(8):
        a.I(f"v_sub_f32 v{XN + j}, v{X + j}, v14")
    rnd(XN)
    for j in range(8):
        a.I(f"v_mul_f32 v{XN + j}, v{XN + j}, v15")
    rnd(XN)
    for j in range(8):
        a.I(f"v_mul_f32 v{XN + j}, v{XN + j}, v{DS + j}")
    rnd(XN)
    for j in range(8):
        a.I(f"v_add_f32 v{Y + j}, v{Y + j}, v{XN + j}")
    for j in range(8):
        a.I(f"v_mul_f32 v{DS + j}, 0xbfb8aa3b, v{O + j}")
    for j in range(8):
        a.I(f"v_exp_f32 v{DS + j}, v{DS + j}")
    for j in range(8):
        a.I(f"v_add_f32 v{DS + j}, 1.0, v{DS + j}")
    for j in range(8):
        a.I(f"v_rcp_f32 v{DS + j}, v{DS + j}")
    for j in range(8):
        a.I(f"v_mul_f32 v{O + j}, v{O + j}, v{DS + j}")
    for j in range(8):
        a.I(f"v_fma_f32 v{X + j}, v{Y + j}, v{O + j}, v{X + j}")
    a.vm(f"buffer_store_dwordx4 {vr(X, 4)}, v6, s[36:39], 0 offen")
    a.vm(f"buffer_store_dwordx4 {vr(X + 4, 4)}, v6, s[36:39], 0 offen offset:32")
    a.label(".Lk2_end")
    a.I("s_endpgm")


def kd(name, vgpr, sgpr=102):
    return f""".amdhsa_kernel {name}
  .amdhsa_next_free_vgpr {vgpr}
  .amdhsa_next_free_sgpr {sgpr}
  .amdhsa_accum_offset {vgpr}
  .amdhsa_group_segment_fixed_size 0
  .amdhsa_kernarg_size 128
  .amdhsa_user_sgpr_count 2
  .amdhsa_user_sgpr_kernarg_segment_ptr 1
  .amdhsa_system_sgpr_workgroup_id_x 1
.end_amdhsa_kernel
"""


def build():
    import gen_ssm
    a = Asm()
    a.raw(f"; @launch kernel={K1} grid=(256,1,1) block=(512,1,1) lds={LDS_TOTAL}")
    a.raw(f"; @launch kernel={K2} grid=(576,1,1) block=(256,1,1) lds=0")
    a.raw('.amdgcn_target "amdgcn-amd-amdhsa--gfx950"')
    a.raw(".text")
    a.raw(f".globl {K1}")
    a.raw(".p2align 8")
    a.raw(f".type {K1},@function")
    a.label(K1)
    prologue(a, None)
    saved = (list(a.vmq), list(a.lgq))
    mlp(a)
    a.label(".Lk1_ssm")
    a.vmq, a.lgq = list(saved[0]), list(saved[1])
    a.mfma_at = {}
    STAMP_V[0] = 22
    gen_ssm.ssm(a, sys.modules[__name__])
    a.label(".Lk1_end")
    a.I("s_endpgm")
    a.vmq, a.lgq, a.mfma_at = [], [], {}
    k2(a)
    a.raw('.section .rodata,"a"')
    a.raw(".p2align 6")
    a.raw(kd(K1, 256))
    a.raw(".p2align 6")
    a.raw(kd(K2, 128))
    return a.text()


if __name__ == "__main__":
    out = f"cdna_kernels/{NAME}.s"
    for arg in sys.argv[1:]:
        if arg.startswith("out="):
            out = arg[4:]
        else:
            k, v = arg.split("=", 1)
            OPT[k] = {"True": True, "False": False}.get(v, v)
    open(out, "w").write(build())
    print("wrote", out)
```

```python
import sys
from asmlib import Asm, vr, sr

NAME = "recurrent_scan__ssm_conv_s5__dense_activation_mish__prompt"
K1 = NAME + "_kernel"
K2 = "fin_kernel"

OPT = dict(stamps=False, store_flags="", prio=False, nodma=False, nofill=False, nobar=False, notr=False)

WS_AGG = 0
AGG_BYTES = 16 * 4608
WS_STATS = 1 << 17
WS_SLAB = 1 << 20
WS_STAMP = 48 << 20
STAMP_V = [54]
WS_SIZE = 268435456

RING = 98304
LDS_TOTAL = 163840

S_W, S_TG, S_HALF, S_TILE, S_ROLE, S_M0B, S_T0, S_T1 = 4, 5, 6, 7, 8, 9, 10, 11
S_ONES, S_MASK, S_X9216, S_B1, S_B2 = 12, 13, 14, 15, 72
P_X, P_LRE, P_LIM, P_BRE, P_BIM, P_CRE, P_CIM, P_LDT = 16, 18, 20, 22, 24, 26, 28, 30
P_DSK, P_BX, P_W1, P_B1, P_W2, P_OUT, P_DBG, P_WS = 32, 34, 36, 38, 40, 42, 44, 46
R_X, R_WA, R_WB, R_WS, R_MISC, R_DBG = 48, 52, 56, 60, 64, 68
S_T2, S_T3, S_T4, S_T5 = 73, 74, 75, 76
S_NT, S_CH0, S_SIDX = 77, 78, 79
S_ST = 80
R_M2, R_M3 = 84, 88

V_LANE = 0
V_XN = 112
V_ACC = (80, 96)
V_A = 64
V_BIAS = 56
V_T = 32
V_P = 24
V_AD1, V_AD2, V_DMA1, V_DMA2, V_ST, V_ACTW, V_ACTR = 1, 2, 3, 4, 5, 6, 7


def srd(a, dst, ptr, nbytes):
    a.I(f"s_mov_b32 s{dst}, s{ptr}")
    a.I(f"s_and_b32 s{dst + 1}, s{ptr + 1}, 0xffff")
    a.I(f"s_mov_b32 s{dst + 2}, {nbytes}")
    a.I(f"s_mov_b32 s{dst + 3}, 0x00020000")


def stamp(a, idx):
    if not OPT["stamps"]:
        return
    a.I(f"s_memrealtime s[{S_ST}:{S_ST + 1}]")
    a.I("s_waitcnt lgkmcnt(0)")
    a.lgq = []
    sv = STAMP_V[0]
    a.I(f"v_mov_b32 v{sv + 1}, s{S_ST}")
    a.I(f"v_mov_b32 v{sv}, s82")
    a.vm(f"buffer_store_dword v{sv + 1}, v{sv}, s[{R_WS}:{R_WS + 3}], 0 offen offset:{idx * 4}")
    a.I(f"s_memtime s[{S_ST}:{S_ST + 1}]")
    a.I("s_waitcnt lgkmcnt(0)")
    a.I(f"v_mov_b32 v{sv + 1}, s{S_ST}")
    a.vm(f"buffer_store_dword v{sv + 1}, v{sv}, s[{R_WS}:{R_WS + 3}], 0 offen offset:{64 + idx * 4}")


def prologue(a, early):
    a.I("s_cmp_ge_u32 s2, 256")
    a.I("s_cbranch_scc1 .Lk1_end")
    a.I("s_load_dwordx16 s[16:31], s[0:1], 0")
    a.I("s_load_dwordx16 s[32:47], s[0:1], 64")
    a.I("v_lshrrev_b32 v1, 6, v0")
    a.I("v_and_b32 v0, 63, v0")
    a.I(f"v_readfirstlane_b32 s{S_W}, v1")
    a.I("s_and_b32 s3, s2, 7")
    a.I(f"s_lshr_b32 s{S_T0}, s2, 3")
    a.I(f"s_and_b32 s{S_TILE}, s{S_T0}, 7")
    a.I(f"s_and_b32 s{S_T1}, s3, 1")
    a.I(f"s_lshl_b32 s{S_T1}, s{S_T1}, 3")
    a.I(f"s_add_u32 s{S_TILE}, s{S_TILE}, s{S_T1}")
    a.I(f"s_lshr_b32 s{S_T0}, s{S_T0}, 3")
    a.I(f"s_lshr_b32 s3, s3, 1")
    a.I(f"s_and_b32 s{S_TG}, s{S_W}, 3")
    a.I(f"s_lshr_b32 s{S_HALF}, s{S_W}, 2")
    a.I(f"s_lshl_b32 s{S_M0B}, s{S_W}, 10")
    a.I(f"s_add_u32 s{S_M0B}, s{S_M0B}, {RING}")
    a.I(f"s_mov_b32 s{S_ONES}, 0x3f803f80")
    a.I(f"s_mov_b32 s{S_MASK}, 0xffff0000")
    a.I(f"s_mov_b32 s{S_X9216}, 9216")
    a.I(f"s_lshl_b32 s{S_T1}, s{S_TILE}, 7")
    a.I(f"s_lshl_b32 s{S_T2}, s{S_W}, 4")
    a.I(f"s_add_u32 s{S_T1}, s{S_T1}, s{S_T2}")
    a.I("v_lshrrev_b32 v8, 3, v0")
    a.I("v_and_b32 v9, 7, v0")
    a.I(f"v_add_u32 v10, s{S_T1}, v8")
    a.I("v_mul_u32_u24 v11, 0x480, v10")
    a.I("v_lshl_add_u32 v11, v9, 4, v11")
    a.I("s_waitcnt lgkmcnt(0)")
    srd(a, R_X, P_X, 2359296)
    srd(a, R_WS, P_WS, WS_SIZE)
    if OPT["stamps"]:
        a.I(f"s_lshl_b32 s82, s2, 3")
        a.I(f"s_add_u32 s82, s82, s{S_W}")
        a.I(f"s_lshl_b32 s82, s82, 7")
        a.I(f"s_add_u32 s82, s82, {WS_STAMP}")
    XR = V_XN
    for sg in range(2):
        for i in range(9):
            so = "0" if sg == 0 else f"s{S_X9216}"
            a.vm(f"buffer_load_dwordx4 {vr(XR + (sg * 9 + i) * 4, 4)}, v11, s[{R_X}:{R_X + 3}], {so} offen offset:{i * 128}",
                 tag=("x", sg, i))
    stamp(a, 0)
    a.I(f"s_cmp_lt_u32 s{S_T0}, 3")
    a.I("s_cbranch_scc0 .Lk1_ssm")
    a.I(f"s_mul_i32 s{S_ROLE}, s3, 3")
    a.I(f"s_add_u32 s{S_ROLE}, s{S_ROLE}, s{S_T0}")


def layernorm(a, ssm):
    XR = V_XN
    T = V_T
    a.I(f"s_lshr_b32 s{S_T1}, s{S_W}, 1")
    a.I(f"s_mul_i32 s{S_T1}, s{S_T1}, 36864")
    a.I(f"s_and_b32 s{S_T2}, s{S_W}, 1")
    a.I(f"s_lshl_b32 s{S_T2}, s{S_T2}, 4")
    a.I(f"v_add_u32 v12, s{S_T2}, v8")
    a.I("v_lshlrev_b32 v13, 1, v9")
    a.I("v_xor_b32 v12, v12, v13")
    a.I("v_lshlrev_b32 v12, 4, v12")
    a.I("v_lshrrev_b32 v13, 1, v9")
    a.I("v_lshl_add_u32 v12, v13, 10, v12")
    a.I("v_and_b32 v13, 1, v9")
    a.I("v_lshl_add_u32 v12, v13, 9, v12")
    a.I(f"v_add_u32 v12, s{S_T1}, v12")
    a.I("v_xor_b32 v13, 0x80, v12")
    a.I("v_and_b32 v18, 31, v0")
    a.I("v_lshrrev_b32 v19, 5, v0")
    if ssm:
        a.I("v_bfe_u32 v20, v18, 2, 1")
        a.I("v_lshlrev_b32 v20, 4, v20")
        a.I("v_lshrrev_b32 v21, 3, v18")
        a.I("v_lshl_add_u32 v20, v21, 2, v20")
        a.I("v_and_b32 v21, 3, v18")
        a.I("v_add_u32 v20, v20, v21")
    else:
        a.I("v_mov_b32 v20, v18")
    a.I("v_lshlrev_b32 v21, 1, v19")
    a.I("v_xor_b32 v20, v20, v21")
    a.I(f"s_mul_i32 s{S_T1}, s{S_TG}, 36864")
    a.I("v_lshlrev_b32 v21, 9, v19")
    a.I(f"v_add_u32 v21, s{S_T1}, v21")
    for u in range(4):
        a.I(f"v_xor_b32 v22, {4 * u}, v20")
        a.I(f"v_lshl_add_u32 v{14 + u}, v22, 4, v21")
    for sg in range(2):
        sA, sB, qA, qB = T + sg * 4, T + sg * 4 + 1, T + sg * 4 + 2, T + sg * 4 + 3
        for i in range(9):
            a.wait(vm=("x", sg, i))
            for j in range(4):
                r = XR + (sg * 9 + i) * 4 + j
                s, q = (sA, qA) if j % 2 == 0 else (sB, qB)
                first = (i == 0 and j < 2)
                a.I(f"v_dot2_f32_bf16 v{s}, v{r}, s{S_ONES}, {'0' if first else 'v%d' % s}")
                a.I(f"v_dot2_f32_bf16 v{q}, v{r}, v{r}, {'0' if first else 'v%d' % q}")
        a.nop(3)
        a.I(f"v_add_f32 v{sA}, v{sA}, v{sB}")
        a.I(f"v_add_f32 v{qA}, v{qA}, v{qB}")
    red = [T, T + 2, T + 4, T + 6]
    for pat in ("quad_perm:[1,0,3,2]", "quad_perm:[2,3,0,1]", "row_half_mirror"):
        a.nop(1)
        for r in red:
            a.I(f"v_add_f32_dpp v{r}, v{r}, v{r} {pat} row_mask:0xf bank_mask:0xf")
    inv = "0x3ae38e39"
    for sg in range(2):
        s, q = T + sg * 4, T + sg * 4 + 2
        m, r = T + 8 + sg * 2, T + 9 + sg * 2
        t1, t2 = T + 12, T + 13
        a.I(f"v_mul_f32 v{s}, {inv}, v{s}")
        a.I(f"v_mul_f32 v{q}, {inv}, v{q}")
        a.I(f"v_fma_f32 v{q}, -v{s}, v{s}, v{q}")
        a.I(f"v_max_f32 v{q}, 0, v{q}")
        a.I(f"v_cvt_pk_bf16_f32 v{m}, v{s}, v{q}")
        a.I(f"v_and_b32 v{q}, s{S_MASK}, v{m}")
        a.I(f"v_lshlrev_b32 v{m}, 16, v{m}")
        a.I(f"v_add_f32 v{q}, 0x3727c5ac, v{q}")
        a.I(f"v_cvt_pk_bf16_f32 v{q}, v{q}, v{q}")
        a.I(f"v_and_b32 v{q}, s{S_MASK}, v{q}")
        a.I(f"v_sqrt_f32 v{q}, v{q}")
        a.nop(1)
        a.I(f"v_cvt_pk_bf16_f32 v{q}, v{q}, v{q}")
        a.I(f"v_and_b32 v{q}, s{S_MASK}, v{q}")
        a.I(f"v_rcp_f32 v{r}, v{q}")
        a.nop(1)
        a.I(f"v_fma_f32 v{t1}, -v{q}, v{r}, 1.0")
        a.I(f"v_fma_f32 v{r}, v{r}, v{t1}, v{r}")
    if ssm:
        skip = a.newlab("nostat")
        a.I(f"s_cmp_lg_u32 s{S_ROLE}, 0")
        a.I(f"s_cbranch_scc1 {skip}")
        a.I("v_cmp_eq_u32 vcc, 0, v9")
        a.I(f"v_lshlrev_b32 v{T + 12}, 3, v10")
        a.I(f"v_add_u32 v{T + 12}, {WS_STATS}, v{T + 12}")
        a.I("s_and_saveexec_b64 s[92:93], vcc")
        a.I(f"buffer_store_dwordx2 {vr(T + 8, 2)}, v{T + 12}, s[{R_WS}:{R_WS + 3}], 0 offen")
        a.I(f"buffer_store_dwordx2 {vr(T + 10, 2)}, v{T + 12}, s[{R_WS}:{R_WS + 3}], 0 offen offset:64")
        a.I("s_mov_b64 exec, s[92:93]")
        a.label(skip)
    for sg in range(2):
        m, r = T + 8 + sg * 2, T + 9 + sg * 2
        for i in range(9):
            base = XR + (sg * 9 + i) * 4
            lo = [T + 14 + 2 * j for j in range(4)]
            for j in range(4):
                a.I(f"v_lshlrev_b32 v{lo[j]}, 16, v{base + j}")
                a.I(f"v_and_b32 v{lo[j] + 1}, s{S_MASK}, v{base + j}")
            for j in range(4):
                a.I(f"v_sub_f32 v{lo[j]}, v{lo[j]}, v{m}")
                a.I(f"v_sub_f32 v{lo[j] + 1}, v{lo[j] + 1}, v{m}")
            for j in range(4):
                a.I(f"v_cvt_pk_bf16_f32 v{base + j}, v{lo[j]}, v{lo[j] + 1}")
            for j in range(4):
                a.I(f"v_lshlrev_b32 v{lo[j]}, 16, v{base + j}")
                a.I(f"v_and_b32 v{lo[j] + 1}, s{S_MASK}, v{base + j}")
            for j in range(4):
                a.I(f"v_mul_f32 v{lo[j]}, v{lo[j]}, v{r}")
                a.I(f"v_mul_f32 v{lo[j] + 1}, v{lo[j] + 1}, v{r}")
            for j in range(4):
                a.I(f"v_cvt_pk_bf16_f32 v{base + j}, v{lo[j]}, v{lo[j] + 1}")
            a.lg(f"ds_write_b128 v{12 + sg}, {vr(base, 4)} offset:{i * 4096}")
    a.wait0(lg=True)
    a.I("s_barrier")
    for s in range(36):
        a.lg(f"ds_read_b128 {vr(V_XN + 4 * s, 4)}, v{14 + (s & 3)} offset:{s * 1024}")


def mlp_dma(a, n):
    if n >= 108 or (OPT["nodma"] and n >= 7):
        return
    slot = (n + 6) & 7
    a.I(f"s_add_u32 m0, s{S_M0B}, {slot * 8192}")
    if n < 54:
        p, kb = divmod(n, 9)
        a.I(f"s_add_u32 s{S_T0}, s{S_B1}, {kb * 64 * 9216 + p * 128}")
        a.vm(f"buffer_load_dwordx4 v{V_DMA1}, s[{R_WA}:{R_WA + 3}], s{S_T0} offen lds", tag=("dma", n))
    else:
        dp, fb = divmod(n - 54, 6)
        a.I(f"s_add_u32 s{S_T0}, s{S_B2}, {fb * 64 * 1152 + dp * 128}")
        a.vm(f"buffer_load_dwordx4 v{V_DMA2}, s[{R_WB}:{R_WB + 3}], s{S_T0} offen lds", tag=("dma", n))


def mlp_tr(a, n, ks):
    if n >= 108 or (OPT["notr"] and n >= 1):
        return
    slot = (n + 6) & 7
    ad, js = (V_AD1, 512) if n < 54 else (V_AD2, 1024)
    for jj in range(2):
        a.lg(f"ds_read_b64_tr_b16 {vr(V_A + 4 * ks + 2 * jj, 2)}, v{ad} offset:{slot * 8192 + ks * 2048 + jj * js}",
             tag=("A", n, ks))


def mish_ops(acc, bias, p):
    ops = []
    T = V_T

    def op(s):
        ops.append(lambda a, s=s: a.I(s))
    ops.append(lambda a: a.need_acc(acc))
    for g in range(4):
        e = [T + 8 * (g & 1) + i for i in range(4)]
        t = [T + 8 * (g & 1) + 4 + i for i in range(4)]
        h = [acc + 4 * g + i for i in range(4)]
        for i in range(4):
            op(f"v_add_f32_dpp v{h[i]}, v{bias}, v{h[i]} row_newbcast:{4 * g + i} row_mask:0xf bank_mask:0xf")
        for i in range(4):
            op(f"v_mul_f32 v{e[i]}, 0x3fb8aa3b, v{h[i]}")
        for i in range(4):
            op(f"v_exp_f32 v{e[i]}, v{e[i]}")
        for i in range(4):
            op(f"v_fma_f32 v{t[i]}, v{e[i]}, -0.5, -1.0")
        for i in range(4):
            op(f"v_fma_f32 v{t[i]}, v{e[i]}, v{t[i]}, -1.0")
        for i in range(4):
            op(f"v_rcp_f32 v{t[i]}, v{t[i]}")
        for i in range(4):
            op(f"v_fma_f32 v{h[i]}, v{h[i]}, v{t[i]}, v{h[i]}")
        op(f"v_cvt_pk_bf16_f32 v{V_P + 2 * g}, v{h[0]}, v{h[1]}")
        op(f"v_cvt_pk_bf16_f32 v{V_P + 2 * g + 1}, v{h[2]}, v{h[3]}")
        if g & 1:
            aa = g >> 1
            ops.append(lambda a, aa=aa: a.lg(
                f"ds_write_b128 v{V_ACTW}, {vr(V_P + 4 * aa, 4)} offset:{(4 * p + aa) * 1024}", tag=("actw", p)))
    return ops


def out_ops(acc, dp):
    ops = []

    def op(s):
        ops.append(lambda a, s=s: a.I(s))
    ops.append(lambda a: a.need_acc(acc))
    for aa in range(2):
        for j in range(4):
            op(f"v_cvt_pk_bf16_f32 v{V_P + 4 * aa + j}, v{acc + 8 * aa + 2 * j}, v{acc + 8 * aa + 2 * j + 1}")
        op(f"s_mov_b32 s{S_T1}, {dp * 65536 + aa * 16384}")
        ops.append(lambda a, aa=aa: a.vm(
            f"buffer_store_dwordx4 {vr(V_P + 4 * aa, 4)}, v{V_ST}, s[{R_WS}:{R_WS + 3}], s{S_T1} offen {OPT['store_flags']}"))
    return ops


def spread(fill, ops, first, last):
    ns = last - first + 1
    n = len(ops)
    k = 0
    for s in range(ns):
        upto = (n * (s + 1) + ns - 1) // ns
        while k < upto:
            fill.setdefault(first + s, []).append(ops[k])
            k += 1


def slab_store_addr(a):
    a.I(f"s_lshl_b32 s{S_T1}, s{S_TILE}, 2")
    a.I(f"s_add_u32 s{S_T1}, s{S_T1}, s{S_TG}")
    a.I(f"s_mul_i32 s{S_T1}, s{S_T1}, 18")
    a.I(f"s_add_u32 s{S_T1}, s{S_T1}, s{S_HALF}")
    a.I(f"s_lshl_b32 s{S_T1}, s{S_T1}, 5")
    a.I(f"s_add_u32 s{S_T1}, s{S_T1}, s{S_SIDX}")
    a.I(f"s_lshl_b32 s{S_T1}, s{S_T1}, 10")
    a.I(f"s_add_u32 s{S_T1}, s{S_T1}, {WS_SLAB}")
    a.I(f"v_lshlrev_b32 v{V_ST}, 4, v0")
    a.I(f"v_add_u32 v{V_ST}, s{S_T1}, v{V_ST}")


def mlp(a):
    srd(a, R_WA, P_W1, 5308416)
    srd(a, R_WB, P_W2, 5308416)
    srd(a, R_MISC, P_B1, 9216)
    a.I(f"s_mul_i32 s{S_B1}, s{S_ROLE}, 768")
    a.I(f"s_mul_i32 s{S_B2}, s{S_ROLE}, {384 * 1152}")
    a.I(f"s_mov_b32 s{S_SIDX}, s{S_ROLE}")
    a.I(f"s_lshl_b32 s{S_T1}, s{S_W}, 3")
    a.I(f"v_add_u32 v20, s{S_T1}, v8")
    a.I("v_bfe_u32 v21, v0, 4, 1")
    a.I("v_lshlrev_b32 v21, 2, v21")
    a.I("v_xor_b32 v21, v21, v9")
    a.I("v_lshlrev_b32 v21, 4, v21")
    a.I("v_mul_u32_u24 v22, 0x2400, v20")
    a.I(f"v_add_u32 v{V_DMA1}, v22, v21")
    a.I("v_mul_u32_u24 v22, 0x480, v20")
    a.I(f"v_add_u32 v{V_DMA2}, v22, v21")
    mlp_dma(a, 0)
    mlp_dma(a, 1)
    a.I("v_bfe_u32 v20, v0, 2, 2")
    a.I("v_lshlrev_b32 v20, 3, v20")
    a.I("v_lshrrev_b32 v21, 5, v0")
    a.I("v_lshl_add_u32 v20, v21, 2, v20")
    a.I("v_and_b32 v21, 3, v0")
    a.I("v_add_u32 v20, v20, v21")
    a.I(f"s_lshl_b32 s{S_T1}, s{S_HALF}, 5")
    a.I(f"v_add_u32 v20, s{S_T1}, v20")
    a.I("v_lshlrev_b32 v20, 1, v20")
    for p in range(6):
        a.vm(f"buffer_load_ushort v{V_BIAS + p}, v20, s[{R_MISC}:{R_MISC + 3}], s{S_B1} offen offset:{p * 128}", tag=("bias", p))
    a.I("v_bfe_u32 v20, v0, 2, 2")
    a.I("v_lshrrev_b32 v21, 1, v20")
    a.I(f"v_xor_b32 v21, s{S_HALF}, v21")
    a.I("v_lshlrev_b32 v21, 6, v21")
    a.I("v_bfe_u32 v22, v0, 4, 1")
    a.I("v_lshl_add_u32 v21, v22, 5, v21")
    a.I("v_and_b32 v22, 3, v0")
    a.I("v_lshl_add_u32 v21, v22, 3, v21")
    a.I("v_lshl_add_u32 v21, v20, 7, v21")
    a.I(f"v_add_u32 v21, {RING}, v21")
    a.I("v_lshrrev_b32 v22, 5, v0")
    a.I(f"v_lshl_add_u32 v{V_AD1}, v22, 10, v21")
    a.I(f"v_lshl_add_u32 v{V_AD2}, v22, 9, v21")
    a.I(f"s_mul_i32 s{S_T1}, s{S_TG}, 24576")
    a.I(f"v_lshlrev_b32 v{V_ACTR}, 4, v0")
    a.I(f"v_add_u32 v{V_ACTR}, s{S_T1}, v{V_ACTR}")
    a.I(f"s_lshl_b32 s{S_T1}, s{S_HALF}, 11")
    a.I(f"v_add_u32 v{V_ACTW}, s{S_T1}, v{V_ACTR}")
    slab_store_addr(a)
    layernorm(a, ssm=False)
    stamp(a, 1)
    for p in range(6):
        a.wait(vm=("bias", p))
        a.I(f"v_lshlrev_b32 v{V_BIAS + p}, 16, v{V_BIAS + p}")
    a.wait(vm=("dma", 0))
    a.wait0(lg=True)
    a.I("s_barrier")
    stamp(a, 2)
    for n in range(2, 7):
        mlp_dma(a, n)
    for ks in range(4):
        mlp_tr(a, 0, ks)

    fill = {}
    for p in range(5):
        spread(fill, mish_ops(V_ACC[p & 1], V_BIAS + p, p), 36 * (p + 1) + 2, 36 * (p + 1) + 33)
    spread(fill, mish_ops(V_ACC[1], V_BIAS + 5, 5), 216 + 2, 216 + 14)

    def actread(kap):
        return lambda a: a.lg(f"ds_read_b128 {vr(V_XN + 4 * kap, 4)}, v{V_ACTR} offset:{kap * 1024}", tag=("act", kap))
    for kap in range(16):
        fill.setdefault(180 + 18 + kap, []).append(actread(kap))
    for kap in range(16, 20):
        fill.setdefault(216 + kap - 16, []).append(actread(kap))
    for kap in range(20, 24):
        fill.setdefault(216 + 16 + (kap - 20) // 2, []).append(actread(kap))
    for dp in range(8):
        spread(fill, out_ops(V_ACC[dp & 1], dp), 216 + 24 * (dp + 1) + 3, 216 + 24 * (dp + 1) + 10)

    for n in range(108):
        a.c(f"stage {n}")
        if n == 54:
            stamp(a, 3)
            a.wait(lg=("actw", 4))
        if n == 58:
            a.wait(lg=("actw", 5))
        if n + 1 < 108:
            a.wait(vm=("dma", n + 1))
            if not OPT["nobar"]:
                a.I("s_barrier")
        mlp_dma(a, n + 7)
        for ks in range(4):
            i = 4 * n + ks
            if n < 54:
                p, kb = divmod(n, 9)
                acc, b, first = V_ACC[p & 1], V_XN + 4 * (4 * kb + ks), (kb == 0 and ks == 0)
                a.wait(lg=("A", n, ks))
            else:
                dp, fb = divmod(n - 54, 6)
                kap = 4 * fb + ks
                acc, b, first = V_ACC[dp & 1], V_XN + 4 * kap, (fb == 0 and ks == 0)
                a.wait(lg=("A", n, ks))
                if dp == 0:
                    a.wait(lg=("act", kap))
            a.mfma(acc, V_A + 4 * ks, b, first)
            mlp_tr(a, n + 1, ks)
            for f in ([] if OPT["nofill"] else fill.get(i, [])):
                f(a)
    for f in out_ops(V_ACC[0], 8):
        f(a)
    stamp(a, 4)
    a.I("s_endpgm")


def k2(a):
    a.raw(".p2align 8")
    a.raw(f".globl {K2}")
    a.raw(f".type {K2},@function")
    a.label(K2)
    a.I("s_cmp_ge_u32 s2, 576")
    a.I("s_cbranch_scc1 .Lk2_end")
    a.I("s_load_dwordx2 s[16:17], s[0:1], 0")
    a.I("s_load_dwordx2 s[18:19], s[0:1], 64")
    a.I("s_load_dwordx2 s[20:21], s[0:1], 104")
    a.I("s_load_dwordx2 s[22:23], s[0:1], 120")
    a.I("v_lshrrev_b32 v1, 6, v0")
    a.I("v_and_b32 v0, 63, v0")
    a.I("v_readfirstlane_b32 s4, v1")
    a.I("s_lshl_b32 s5, s2, 2")
    a.I("s_add_u32 s5, s5, s4")
    a.I("s_and_b32 s6, s5, 1")
    a.I("s_lshr_b32 s7, s5, 1")
    a.I("s_mul_i32 s8, s7, 3641")
    a.I("s_lshr_b32 s8, s8, 16")
    a.I("s_mul_i32 s9, s8, 18")
    a.I("s_sub_u32 s9, s7, s9")
    a.I("s_lshl_b32 s10, s5, 14")
    a.I(f"s_add_u32 s10, s10, {WS_SLAB}")
    a.I("v_lshlrev_b32 v1, 4, v0")
    a.I("v_add_u32 v1, s10, v1")
    a.I("v_and_b32 v2, 31, v0")
    a.I("s_lshl_b32 s11, s8, 5")
    a.I("v_add_u32 v2, s11, v2")
    a.I("v_lshrrev_b32 v3, 5, v0")
    a.I("s_lshl_b32 s12, s9, 5")
    a.I("s_lshl_b32 s13, s6, 4")
    a.I("s_add_u32 s12, s12, s13")
    a.I("v_lshl_add_u32 v3, v3, 2, s12")
    a.I("v_mul_u32_u24 v4, 576, v2")
    a.I("v_add_u32 v4, v4, v3")
    a.I("v_lshlrev_b32 v5, 1, v4")
    a.I("v_lshlrev_b32 v6, 2, v4")
    a.I("v_lshlrev_b32 v7, 1, v3")
    a.I("v_lshlrev_b32 v8, 3, v2")
    a.I(f"v_add_u32 v8, {WS_STATS}, v8")
    a.I("s_mov_b32 s14, 0xffff0000")
    a.I("s_waitcnt lgkmcnt(0)")
    srd(a, 24, 22, WS_SIZE)
    srd(a, 28, 16, 2359296)
    srd(a, 32, 18, 1152)
    srd(a, 36, 20, 4718592)
    if OPT["stamps"]:
        a.I("s_memrealtime s[50:51]")
        a.I("s_lshl_b32 s52, s5, 3")
        a.I(f"s_add_u32 s52, s52, {WS_STAMP + (1 << 20)}")
        a.I("s_waitcnt lgkmcnt(0)")
        a.I("v_mov_b32 v9, s52")
        a.I("v_mov_b32 v10, s50")
        a.vm("buffer_store_dword v10, v9, s[24:27], 0 offen")
    SL = 64
    for s in range(16):
        so = "0"
        if s >= 4:
            a.I(f"s_mov_b32 s{40 + s // 4}, {(s // 4) * 4096}") if s % 4 == 0 else None
            so = f"s{40 + s // 4}"
        a.vm(f"buffer_load_dwordx4 {vr(SL + 4 * s, 4)}, v1, s[24:27], {so} offen offset:{(s % 4) * 1024}", tag=("sl", s))
    a.vm("buffer_load_dwordx2 v[10:11], v5, s[28:31], 0 offen", tag="x0")
    a.vm("buffer_load_dwordx2 v[12:13], v5, s[28:31], 0 offen offset:16", tag="x1")
    a.vm("buffer_load_dwordx2 v[14:15], v8, s[24:27], 0 offen", tag="st")
    a.vm("buffer_load_dwordx2 v[16:17], v7, s[32:35], 0 offen", tag="d0")
    a.vm("buffer_load_dwordx2 v[18:19], v7, s[32:35], 0 offen offset:16", tag="d1")
    O, Y = 20, 28
    for s in range(16):
        a.wait(vm=("sl", s))
        dst = O if s < 12 else Y
        first = s in (0, 12)
        for j in range(4):
            r = SL + 4 * s + j
            if first:
                a.I(f"v_lshlrev_b32 v{dst + 2 * j}, 16, v{r}")
                a.I(f"v_and_b32 v{dst + 2 * j + 1}, s14, v{r}")
            else:
                a.I(f"v_lshlrev_b32 v{36 + 2 * j}, 16, v{r}")
                a.I(f"v_and_b32 v{37 + 2 * j}, s14, v{r}")
        if not first:
            for j in range(8):
                a.I(f"v_add_f32 v{dst + j}, v{dst + j}, v{36 + j}")
    a.wait(vm="d1")
    X, XN, DS = 36, 44, 52
    for j in range(4):
        a.I(f"v_lshlrev_b32 v{X + 2 * j}, 16, v{10 + j}")
        a.I(f"v_and_b32 v{X + 2 * j + 1}, s14, v{10 + j}")
        a.I(f"v_lshlrev_b32 v{DS + 2 * j}, 16, v{16 + j}")
        a.I(f"v_and_b32 v{DS + 2 * j + 1}, s14, v{16 + j}")

    def rnd(base):
        for j in range(4):
            a.I(f"v_cvt_pk_bf16_f32 v{60 + j}, v{base + 2 * j}, v{base + 2 * j + 1}")
        for j in range(4):
            a.I(f"v_lshlrev_b32 v{base + 2 * j}, 16, v{60 + j}")
            a.I(f"v_and_b32 v{base + 2 * j + 1}, s14, v{60 + j}")
    for j in range(8):
        a.I(f"v_sub_f32 v{XN + j}, v{X + j}, v14")
    rnd(XN)
    for j in range(8):
        a.I(f"v_mul_f32 v{XN + j}, v{XN + j}, v15")
    rnd(XN)
    for j in range(8):
        a.I(f"v_mul_f32 v{XN + j}, v{XN + j}, v{DS + j}")
    rnd(XN)
    for j in range(8):
        a.I(f"v_add_f32 v{Y + j}, v{Y + j}, v{XN + j}")
    for j in range(8):
        a.I(f"v_mul_f32 v{DS + j}, 0xbfb8aa3b, v{O + j}")
    for j in range(8):
        a.I(f"v_exp_f32 v{DS + j}, v{DS + j}")
    for j in range(8):
        a.I(f"v_add_f32 v{DS + j}, 1.0, v{DS + j}")
    for j in range(8):
        a.I(f"v_rcp_f32 v{DS + j}, v{DS + j}")
    for j in range(8):
        a.I(f"v_mul_f32 v{O + j}, v{O + j}, v{DS + j}")
    for j in range(8):
        a.I(f"v_fma_f32 v{X + j}, v{Y + j}, v{O + j}, v{X + j}")
    a.vm(f"buffer_store_dwordx4 {vr(X, 4)}, v6, s[36:39], 0 offen")
    a.vm(f"buffer_store_dwordx4 {vr(X + 4, 4)}, v6, s[36:39], 0 offen offset:32")
    if OPT["stamps"]:
        a.I("s_waitcnt vmcnt(0)")
        a.I("s_memrealtime s[50:51]")
        a.I("s_waitcnt lgkmcnt(0)")
        a.I("v_mov_b32 v10, s50")
        a.vm("buffer_store_dword v10, v9, s[24:27], 0 offen offset:4")
    a.label(".Lk2_end")
    a.I("s_endpgm")


def kd(name, vgpr, sgpr=102):
    return f""".amdhsa_kernel {name}
  .amdhsa_next_free_vgpr {vgpr}
  .amdhsa_next_free_sgpr {sgpr}
  .amdhsa_accum_offset {vgpr}
  .amdhsa_group_segment_fixed_size 0
  .amdhsa_kernarg_size 128
  .amdhsa_user_sgpr_count 2
  .amdhsa_user_sgpr_kernarg_segment_ptr 1
  .amdhsa_system_sgpr_workgroup_id_x 1
.end_amdhsa_kernel
"""


def build():
    import gen_ssm
    a = Asm()
    a.raw(f"; @launch kernel={K1} grid=(256,1,1) block=(512,1,1) lds={LDS_TOTAL}")
    a.raw(f"; @launch kernel={K2} grid=(576,1,1) block=(256,1,1) lds=0")
    a.raw('.amdgcn_target "amdgcn-amd-amdhsa--gfx950"')
    a.raw(".text")
    a.raw(f".globl {K1}")
    a.raw(".p2align 8")
    a.raw(f".type {K1},@function")
    a.label(K1)
    prologue(a, None)
    saved = (list(a.vmq), list(a.lgq))
    mlp(a)
    a.label(".Lk1_ssm")
    a.vmq, a.lgq = list(saved[0]), list(saved[1])
    a.mfma_at = {}
    STAMP_V[0] = 22
    gen_ssm.ssm(a, sys.modules[__name__])
    a.label(".Lk1_end")
    a.I("s_endpgm")
    a.vmq, a.lgq, a.mfma_at = [], [], {}
    k2(a)
    a.raw('.section .rodata,"a"')
    a.raw(".p2align 6")
    a.raw(kd(K1, 256))
    a.raw(".p2align 6")
    a.raw(kd(K2, 128))
    return a.text()


if __name__ == "__main__":
    out = f"cdna_kernels/{NAME}.s"
    for arg in sys.argv[1:]:
        if arg.startswith("out="):
            out = arg[4:]
        else:
            k, v = arg.split("=", 1)
            OPT[k] = {"True": True, "False": False}.get(v, v)
            if k == "slab_mb":
                WS_SLAB = int(v) << 20
    open(out, "w").write(build())
    print("wrote", out)
```
